```python
import torch

def _softmax(x, axis=-1):
    return torch.softmax(x, dim=axis)
def _gelu(x):
    return torch.nn.functional.gelu(x, approximate="tanh")
def _silu(x):
    return torch.nn.functional.silu(x)
def _sigmoid(x):
    return torch.sigmoid(x)
def _layernorm(x, axis=-1, eps=1e-5):
    m = x.mean(dim=axis, keepdim=True)
    v = x.var(dim=axis, keepdim=True, unbiased=False)
    return (x - m) / torch.sqrt(v + eps)
def _scatter_add(tgt, idx, src, axis=0):
    return tgt.clone().index_add_(axis, idx, src)
def _segment_sum(src, seg, n):
    out = torch.zeros((n,) + src.shape[1:], dtype=src.dtype)
    return out.index_add_(0, seg, src)
def _pad(x, pw):
    flat = tuple(v for pair in reversed(pw) for v in pair)
    return torch.nn.functional.pad(x, flat)

kernel_name = 'recurrent_scan__sliding_block__glu_gated_bilinear__prompt'

def setup_inputs():

    _w = (lambda a: (lambda t: t.to(torch.bfloat16) if t.is_floating_point() else t)(torch.as_tensor(a)))
    def _A_setup():
        B, S, D = 1, 2048, 448
        return {
            "x": _w((lambda *s: torch.randn(*s, dtype=torch.bfloat16) * 0.05)(B, S, D)),
            "wqkv": _w((lambda *s: torch.randn(*s, dtype=torch.bfloat16) * 0.2)(D, 3 * D)),
            "wo": _w((lambda *s: torch.randn(*s, dtype=torch.bfloat16) * 0.2)(D, D)),
        }
    _A_in = _A_setup()

    def _B_setup():
        B, S, D, F = 1, 2048, 448, 1792
        return {
            "x": _w((lambda *s: torch.randn(*s, dtype=torch.bfloat16) * 0.05)(B, S, D)),
            "w_gate": _w((lambda *s: torch.randn(*s, dtype=torch.bfloat16) * 0.1)(D, F) * (D ** -0.5)),
            "w_up": _w((lambda *s: torch.randn(*s, dtype=torch.bfloat16) * 0.1)(D, F) * (D ** -0.5)),
            "w_down": _w((lambda *s: torch.randn(*s, dtype=torch.bfloat16) * 0.1)(F, D) * (F ** -0.5)),
        }
    _B_in = _B_setup()

    return {
        "A_x": _A_in["x"],
        "A_wqkv": _A_in["wqkv"],
        "A_wo": _A_in["wo"],
        "B_x": _B_in["x"],
        "B_w_gate": _B_in["w_gate"],
        "B_w_up": _B_in["w_up"],
        "B_w_down": _B_in["w_down"],
    }

def reference(A_x, A_wqkv, A_wo, B_x, B_w_gate, B_w_up, B_w_down):
    def _A_ref(x, wqkv, wo):
        B, S, D = x.shape
        H = 16; Dh = D // H; W = 256
        qkv = (lambda x, *d: x.permute(*d))((x @ wqkv).reshape(B, S, 3, H, Dh), 2, 0, 3, 1, 4)
        q, k, v = qkv[0], qkv[1], qkv[2]
        scores = torch.einsum("bhqd,bhkd->bhqk", q, k) * (Dh ** -0.5)
        idx = torch.arange(S)
        mask = (idx[:, None] - idx[None, :] >= 0) & (idx[:, None] - idx[None, :] < W)
        scores = torch.where(mask[None, None], scores, -1e9)
        p = _softmax(scores, axis=-1)
        o = torch.einsum("bhqk,bhkd->bhqd", p, v)
        return (lambda x, *d: x.permute(*d))(o, 0, 2, 1, 3).reshape(B, S, D) @ wo

    def _B_ref(x, w_gate, w_up, w_down):
        g = torch.einsum("bsd,df->bsf", x, w_gate)
        u = torch.einsum("bsd,df->bsf", x, w_up)
        h = g * u
        return torch.einsum("bsf,fd->bsd", h, w_down)

    x = A_x
    xn = _layernorm(x, axis=-1)
    s = _A_ref(xn, A_wqkv, A_wo)
    g = _silu(_B_ref(xn, B_w_gate, B_w_up, B_w_down))
    return x + s * g
```

```python
import re

TRANS = ("v_exp_f32", "v_log_f32", "v_rcp_f32", "v_rsq_f32", "v_sqrt_f32", "v_sin_f32", "v_cos_f32")

def _regs(tok):
    tok = tok.strip()
    tok = tok.lstrip('-')
    m = re.fullmatch(r"abs\((.*)\)", tok)
    if m: tok = m.group(1)
    m = re.fullmatch(r"([vsa])\[(\d+):(\d+)\]", tok)
    if m:
        return {(m.group(1), i) for i in range(int(m.group(2)), int(m.group(3)) + 1)}
    m = re.fullmatch(r"([vsa])(\d+)", tok)
    if m:
        return {(m.group(1), int(m.group(2)))}
    if tok in ("vcc", "exec", "m0", "scc"):
        return {(tok, 0)}
    if tok in ("vcc_lo", "vcc_hi"):
        return {("vcc", 0)}
    return set()

def split_ops(s):
    out, depth, cur = [], 0, ""
    for ch in s:
        if ch == '[' or ch == '(': depth += 1
        if ch == ']' or ch == ')': depth -= 1
        if ch == ',' and depth == 0:
            out.append(cur); cur = ""
        else:
            cur += ch
    if cur.strip(): out.append(cur)
    return [o.strip() for o in out]

class Ins:
    __slots__ = ("text", "op", "wr", "rd", "kind", "passes", "srcc", "is_label", "storedata", "maskrd", "lds_dma")
    def __init__(self, text):
        self.text = text
        self.is_label = False
        self.wr, self.rd = set(), set()
        self.kind = "other"; self.passes = 0; self.srcc = set(); self.storedata = set(); self.maskrd = set()
        self.lds_dma = False
        t = text.split(";")[0].strip()
        if not t or t.startswith("."):
            self.op = ""; self.kind = "dir"; return
        if t.endswith(":"):
            self.op = ""; self.is_label = True; self.kind = "label"; return
        parts = t.split(None, 1)
        op = parts[0]; self.op = op
        rest = parts[1] if len(parts) > 1 else ""
        ops = split_ops(rest)
        clean = []
        for o in ops:
            clean.append(o.split()[0] if o.split() else o)
        R = [_regs(o) for o in clean]
        if op.startswith("v_mfma"):
            self.kind = "mfma"
            self.passes = 8 if "32x32" in op else 4
            self.wr = R[0]; self.rd = R[1] | R[2] | R[3]; self.srcc = R[3]
        elif op.startswith("v_"):
            self.kind = "trans" if op.replace("_e32", "").replace("_e64", "") in TRANS else "valu"
            if op.startswith("v_cmp"):
                self.wr = R[0]; self.rd = set().union(*R[1:])
            elif op.startswith("v_readfirstlane") or op.startswith("v_readlane"):
                self.kind = "readlane"; self.wr = R[0]; self.rd = set().union(*R[1:])
            elif op.startswith("v_permlane"):
                self.kind = "permlane"; self.wr = R[0] | R[1]; self.rd = R[0] | R[1]
            elif op.startswith("v_add_co") or op.startswith("v_addc_co") or op.startswith("v_sub_co"):
                self.wr = R[0] | R[1]; self.rd = set().union(*R[2:])
            else:
                self.wr = R[0]; self.rd = set().union(*R[1:]) if len(R) > 1 else set()
                if op.startswith("v_fmac") or op.startswith("v_dot2c") or op.startswith("v_pk_fmac"):
                    self.rd |= R[0]
                if op.startswith("v_cndmask") and len(R) == 3:
                    self.rd |= {("vcc", 0)}
            if "dpp" in t or "quad_perm" in t or "row_" in t:
                self.kind = "dpp"
        elif op.startswith("ds_"):
            self.kind = "ds"
            if op.startswith("ds_read") or op.startswith("ds_bpermute") or op.startswith("ds_swizzle") or op.startswith("ds_permute"):
                self.wr = R[0]; self.rd = set().union(*R[1:])
            else:
                self.rd = set().union(*R)
        elif op.startswith("buffer_") or op.startswith("global_"):
            self.kind = "vmem"
            if " lds" in (" " + rest) or "_lds_" in op:
                self.lds_dma = True
                self.rd = set().union(*R) if R else set()
            elif "load" in op:
                self.wr = R[0]; self.rd = set().union(*R[1:])
            elif "store" in op:
                self.rd = set().union(*R)
                if op.startswith("buffer_store"): self.storedata = R[0]
                else: self.storedata = R[1]
                if not ("x4" in op or "x3" in op): self.storedata = set()
            elif "atomic" in op:
                self.rd = set().union(*R)
                if " sc0" in rest: self.wr = R[0] if op.startswith("buffer") else R[0]
            else:
                self.rd = set().union(*R) if R else set()
        elif op.startswith("s_"):
            self.kind = "salu"
            if op.startswith("s_cmp") or op.startswith("s_cbranch") or op in ("s_branch", "s_barrier", "s_waitcnt", "s_nop", "s_endpgm", "s_setprio", "s_sleep"):
                self.rd = set().union(*R) if R else set()
            else:
                self.wr = R[0] if R else set(); self.rd = set().union(*R[1:]) if len(R) > 1 else set()

def nstates(i):
    if i.kind in ("dir", "label"): return 0
    if i.op == "s_nop":
        return int(i.text.split()[1], 0) + 1
    return 1

class Asm:
    def __init__(self):
        self.lines = []
    def __call__(self, s):
        for l in s.strip("\n").split("\n"):
            self.lines.append(l.strip())
    def e(self, s): self(s)
    def label(self, n): self.lines.append(n + ":")
    def comment(self, s): self.lines.append("; " + s)

    def finalize(self):
        ins = [Ins(l) for l in self.lines]
        out = []
        WIN = 24
        for cur in ins:
            if cur.kind in ("dir",) or (cur.op == "" and not cur.is_label):
                out.append(cur); continue
            if cur.is_label:
                out.append(cur); continue
            need = 0
            dist = 0
            for prev in reversed(out):
                if prev.kind in ("dir", "label"): continue
                if dist >= WIN: break
                req = self.required(prev, cur)
                if req > dist:
                    need = max(need, req - dist)
                dist += nstates(prev)
            while need > 0:
                k = min(need, 16)
                out.append(Ins("s_nop %d" % (k - 1)))
                need -= k
            out.append(cur)
        return [i.text for i in out]

    @staticmethod
    def required(p, c):
        isvalu = lambda k: k in ("valu", "trans", "dpp", "permlane", "readlane")
        r = 0
        vw = {x for x in p.wr if x[0] in ("v", "a")}
        sw = {x for x in p.wr if x[0] in ("s", "vcc")}
        if p.kind == "mfma":
            D = p.wr
            if c.kind == "mfma":
                ab = c.rd - c.srcc
                if D & ab: r = max(r, 12 if p.passes == 8 else 8)
                if D & c.srcc and c.srcc != D: r = max(r, 10 if p.passes == 8 else 6)
                if D & c.srcc and c.srcc == D and c.passes != p.passes: r = max(r, 10 if p.passes == 8 else 6)
                if (D & c.wr) and not (D & c.srcc): r = max(r, 12 if p.passes == 8 else 8)
            else:
                if D & (c.rd | c.wr): r = max(r, 12 if p.passes == 8 else 8)
            if isvalu(c.kind) and (p.srcc & c.wr): r = max(r, 7 if p.passes == 8 else 3)
        if isvalu(p.kind):
            if c.kind == "mfma" and (vw & c.rd): r = max(r, 2)
            if p.kind == "trans" and c.kind != "trans" and (vw & c.rd) and isvalu(c.kind): r = max(r, 1)
            if p.kind == "trans" and (vw & c.rd) and c.kind in ("ds", "vmem"): r = max(r, 1)
            if c.kind == "permlane" and (vw & c.rd): r = max(r, 2)
            if c.kind == "dpp" and (vw & c.rd): r = max(r, 2)
            if c.kind == "readlane" and (vw & c.rd): r = max(r, 1)
            if sw:
                if isvalu(c.kind) and (sw & c.rd): r = max(r, 4 if c.kind == "readlane" else 2)
                if c.kind == "vmem" and (sw & c.rd): r = max(r, 5)
                if c.kind == "salu" and (sw & c.rd): r = max(r, 1)
        if p.op.startswith("v_dot"):
            if c.op != p.op and (vw & (c.rd | c.wr)): r = max(r, 3)
        if p.kind == "salu" and (("m0", 0) in p.wr) and c.lds_dma: r = max(r, 1)
        if p.kind == "vmem" and p.storedata and (p.storedata & c.wr):
            r = max(r, 2)
        return r
```

```python
import sys
from asmlib import Asm

NAME = "recurrent_scan__sliding_block__glu_gated_bilinear__prompt"
WS_QKV = 0
WS_H = 0x600000
WS_O = 0xD00000
WS_SIZE = 0x10000000

def vr(b, n): return "v[%d:%d]" % (b, b + n - 1)
def sr(b, n): return "s[%d:%d]" % (b, b + n - 1)

def srd(a, d, lo, size):
    a(f"s_mov_b32 s{d}, s{lo}")
    a(f"s_mov_b32 s{d+1}, s{lo+1}")
    a(f"s_mov_b32 s{d+2}, {size}")
    a(f"s_mov_b32 s{d+3}, 0x00020000")

STAMP = False
def gen_k1(a):
    nst = [0]
    def stamp():
        if not STAMP: return
        i = nst[0]; nst[0] += 1
        a(f"s_memtime s[{64+2*i}:{65+2*i}]")
    def dump_stamps():
        if not STAMP: return
        a("s_waitcnt lgkmcnt(0)")
        a("s_load_dwordx2 s[16:17], s[0:1], 64")
        a("s_waitcnt lgkmcnt(0)")
        a("s_mov_b32 s18, 65536")
        a("s_mov_b32 s19, 0x00020000")
        a("s_cmp_lg_u32 s2, 37")
        a("s_cbranch_scc1 K1_NOST%d" % nst[0] + lab[0])
        a("s_lshl_b32 s50, s3, 7")
        for i in range(nst[0]):
            a(f"v_mov_b32 v190, s{64+2*i}")
            a(f"v_mov_b32 v191, {4*i}")
            a(f"buffer_store_dword v190, v191, s[16:19], s50 offen")
        a("K1_NOST%d" % nst[0] + lab[0] + ":")
    lab = [""]
    SLOT = 28672
    XB = SLOT
    PF = 3
    V_LANE, V_L16, V_Q, V_G0, V_G1, V_A, V_B = 1, 2, 3, 4, 5, 6, 7
    V_TRQ0, V_TRQ1, V_TRG0, V_TRG1 = 8, 9, 10, 11
    V_AD = [[12, 13], [14, 15]]
    V_WF = 16
    V_ACA, V_ACB = 32, 48
    V_XN = 64
    V_T = 176
    V_PAD = 184
    V_X = 186
    S_W, S_TM, S_TN, S_T, S_G = 3, 33, 34, 35, 36
    S_5G = 37
    S_TOK = 38
    S_MHI = 40
    S_MT = 42
    S_MC = 44
    S_SO = 46
    S_ST16 = 47
    S_EXB = 48
    S_T0, S_T1, S_T2, S_T3 = 50, 51, 52, 53
    S_STO = 54
    S_W4 = 55
    SRD_X, SRD_WS, SRD_A, SRD_B = 4, 20, 24, 28

    a("s_cmp_ge_u32 s2, 256")
    a("s_cbranch_scc1 K1_END")
    stamp()
    a("s_load_dwordx2 s[16:17], s[0:1], 0")
    a("s_load_dwordx2 s[8:9], s[0:1], 8")
    a("s_load_dwordx4 s[12:15], s[0:1], 32")
    a("s_load_dwordx2 s[10:11], s[0:1], 72")
    a(f"v_and_b32 v{V_LANE}, 63, v0")
    a(f"v_lshrrev_b32 v{V_X}, 6, v0")
    a(f"v_lshlrev_b32 v{V_L16}, 4, v{V_LANE}")
    a(f"v_readfirstlane_b32 s{S_W}, v{V_X}")
    a(f"s_and_b32 s{S_T0}, s2, 7")
    a(f"s_lshr_b32 s{S_T1}, s2, 3")
    a(f"s_and_b32 s{S_T}, s{S_T0}, 1")
    a(f"s_lshl_b32 s{S_T}, s{S_T}, 3")
    a(f"s_and_b32 s{S_T2}, s{S_T1}, 7")
    a(f"s_add_u32 s{S_T}, s{S_T}, s{S_T2}")
    a(f"s_lshr_b32 s{S_G}, s{S_T0}, 1")
    a(f"s_lshl_b32 s{S_G}, s{S_G}, 2")
    a(f"s_lshr_b32 s{S_T2}, s{S_T1}, 3")
    a(f"s_add_u32 s{S_G}, s{S_G}, s{S_T2}")
    a(f"s_mul_i32 s{S_5G}, s{S_G}, 5")
    a(f"s_and_b32 s{S_TM}, s{S_W}, 3")
    a(f"s_lshr_b32 s{S_TN}, s{S_W}, 2")
    a(f"s_lshl_b32 s{S_TOK}, s{S_T}, 2")
    a(f"s_add_u32 s{S_TOK}, s{S_TOK}, s{S_TM}")
    a(f"s_lshl_b32 s{S_W4}, s{S_W}, 12")
    a(f"s_mov_b32 s{S_MHI}, 0")
    a(f"s_mov_b32 s{S_MHI+1}, -1")
    a("s_mov_b32 s56, 1204224")
    a("s_mov_b32 s57, 43008")
    R, C, MH, H, MG, X0, X1, X2 = [V_X + i for i in range(8)]
    a(f"v_bfe_u32 v{R}, v{V_LANE}, 2, 2")
    a(f"v_and_b32 v{C}, 3, v{V_LANE}")
    a(f"v_bfe_u32 v{MH}, v{V_LANE}, 4, 1")
    a(f"v_lshrrev_b32 v{H}, 5, v{V_LANE}")
    a(f"v_lshl_add_u32 v{MG}, v{MH}, 2, v{C}")
    a(f"v_and_b32 v{X0}, 1, v{MG}")
    a(f"v_lshlrev_b32 v{X0}, 2, v{X0}")
    a(f"v_lshrrev_b32 v{X1}, 1, v{MG}")
    a(f"v_or_b32 v{X0}, v{X0}, v{X1}")
    a(f"v_min_u32 v{X0}, 6, v{X0}")
    a(f"s_mul_i32 s{S_T0}, s{S_TN}, 56")
    a(f"v_lshlrev_b32 v{X0}, 3, v{X0}")
    a(f"v_add_u32 v{X0}, s{S_T0}, v{X0}")
    a(f"v_lshrrev_b32 v{X1}, 4, v{X0}")
    a(f"v_bfe_u32 v{X2}, v{R}, 1, 1")
    a(f"v_lshlrev_b32 v{X2}, 2, v{X2}")
    a(f"v_xor_b32 v{X1}, v{X1}, v{X2}")
    a(f"v_and_b32 v{X0}, 15, v{X0}")
    a(f"v_lshl_add_u32 v{X0}, v{X1}, 4, v{X0}")
    a(f"v_lshl_add_u32 v{X2}, v{H}, 3, v{R}")
    a(f"v_lshl_add_u32 v{V_TRQ0}, v{X2}, 7, v{X0}")
    a(f"v_add_u32 v{V_TRQ1}, 512, v{V_TRQ0}")
    a(f"s_lshl_b32 s{S_T0}, s{S_TN}, 1")
    a(f"v_and_b32 v{X0}, 1, v{C}")
    a(f"v_add_u32 v{X0}, s{S_T0}, v{X0}")
    a(f"v_lshlrev_b32 v{X1}, 1, v{MH}")
    a(f"v_xor_b32 v{X0}, v{X0}, v{X1}")
    a(f"v_lshlrev_b32 v{X0}, 4, v{X0}")
    a(f"v_lshrrev_b32 v{X1}, 1, v{C}")
    a(f"v_lshl_add_u32 v{X0}, v{X1}, 3, v{X0}")
    a(f"v_lshl_add_u32 v{X0}, v{X2}, 6, v{X0}")
    a(f"v_lshl_add_u32 v{V_TRG0}, v{MH}, 10, v{X0}")
    a(f"v_add_u32 v{V_TRG1}, 256, v{V_TRG0}")
    a(f"v_lshrrev_b32 v{X0}, 3, v{V_LANE}")
    a(f"v_and_b32 v{X1}, 7, v{V_LANE}")
    a(f"v_bfe_u32 v{X2}, v{V_LANE}, 4, 1")
    a(f"v_lshlrev_b32 v{X2}, 2, v{X2}")
    a(f"v_xor_b32 v{X1}, v{X1}, v{X2}")
    a(f"v_lshlrev_b32 v{X1}, 4, v{X1}")
    a(f"s_movk_i32 s{S_T0}, 2688")
    a(f"v_mad_u32_u24 v{V_Q}, v{X0}, s{S_T0}, v{X1}")
    a(f"v_lshrrev_b32 v{X0}, 2, v{V_LANE}")
    a(f"v_lshlrev_b32 v{X1}, 4, v{C}")
    a(f"s_movk_i32 s{S_T0}, 3584")
    a(f"v_mad_u32_u24 v{V_G0}, v{X0}, s{S_T0}, v{X1}")
    a(f"v_xor_b32 v{V_G1}, 32, v{V_G0}")
    V_XG, V_XW, V_XR = 16, 17, 18
    STG = 3 * SLOT
    a(f"v_lshrrev_b32 v{X0}, 2, v{V_LANE}")
    a(f"s_movk_i32 s{S_T0}, 896")
    a(f"v_lshlrev_b32 v{X1}, 4, v{C}")
    a(f"v_mad_u32_u24 v{V_XG}, v{X0}, s{S_T0}, v{X1}")
    a(f"s_lshl_b32 s{S_T1}, s{S_W}, 4")
    a(f"v_add_u32 v{X0}, s{S_T1}, v{X0}")
    a(f"s_movk_i32 s{S_T0}, 464")
    a(f"v_mad_u32_u24 v{V_XW}, v{X0}, s{S_T0}, v{X1}")
    a(f"v_add_u32 v{V_XW}, {STG}, v{V_XW}")
    a(f"v_and_b32 v{X0}, 31, v{V_LANE}")
    a(f"s_lshl_b32 s{S_T1}, s{S_TM}, 5")
    a(f"v_add_u32 v{X0}, s{S_T1}, v{X0}")
    a(f"v_lshlrev_b32 v{X1}, 4, v{H}")
    a(f"v_mad_u32_u24 v{V_XR}, v{X0}, s{S_T0}, v{X1}")
    a(f"v_add_u32 v{V_XR}, {STG}, v{V_XR}")
    a("s_waitcnt lgkmcnt(0)")
    stamp()
    srd(a, SRD_X, 16, 1835008)
    srd(a, SRD_WS, 10, WS_SIZE)
    a(f"s_mov_b32 s{SRD_A+3}, 0x00020000")
    a(f"s_mov_b32 s{SRD_B+3}, 0x00020000")

    vm = []

    def dma_setup(pd):
        a(f"s_add_u32 s{S_T0}, s{S_5G}, {pd}")
        a(f"s_mul_i32 s{S_T1}, s{S_T0}, 112")
        a(f"s_sub_u32 s{S_T2}, s{S_T0}, 24")
        a(f"s_lshl_b32 s{S_T2}, s{S_T2}, 6")
        a(f"s_cmp_ge_u32 s{S_T0}, 24")
        a(f"s_cselect_b64 s[{SRD_A}:{SRD_A+1}], s[12:13], s[8:9]")
        a(f"s_cselect_b64 s[{SRD_B}:{SRD_B+1}], s[14:15], s[8:9]")
        a(f"s_cselect_b32 s{SRD_A+2}, 1605632, s56")
        a(f"s_cselect_b32 s{SRD_B+2}, 1605632, s56")
        a(f"s_cselect_b32 s{S_ST16}, 57344, s57")
        a(f"s_cselect_b32 s{S_EXB}, 0, 21504")
        a(f"s_cselect_b32 s{S_T1}, s{S_T2}, s{S_T1}")
        a(f"s_cselect_b64 s[{S_MT}:{S_MT+1}], -1, 0")
        a(f"s_lshl_b32 s{S_T2}, s{S_W}, 1")
        a(f"s_mul_i32 s{S_SO}, s{S_T2}, s{S_ST16}")
        a(f"s_add_u32 s{S_SO}, s{S_SO}, s{S_T1}")
        a(f"v_cndmask_b32 v{V_A}, v{V_Q}, v{V_G0}, s[{S_MT}:{S_MT+1}]")
        a(f"v_cndmask_b32 v{V_B}, v{V_Q}, v{V_G1}, s[{S_MT}:{S_MT+1}]")

    def dma_group(gi):
        pd, half = gi >> 1, gi & 1
        if half == 0:
            dma_setup(pd)
        else:
            a(f"s_mul_i32 s{S_T0}, s{S_ST16}, 14")
            a(f"s_add_u32 s{S_SO}, s{S_SO}, s{S_T0}")
        slot = (gi % 5) * SLOT
        a(f"s_cmp_eq_u32 s{S_W}, 7")
        a(f"s_cbranch_scc1 K1_SKIPDMA{gi}")
        a(f"s_add_u32 s{S_T0}, s{S_SO}, s{S_EXB}")
        a(f"s_add_u32 s{S_T1}, s{S_SO}, s{S_ST16}")
        a(f"s_add_u32 s{S_T2}, s{S_T0}, s{S_ST16}")
        for i, (srdn, vo, so) in enumerate([(SRD_A, V_A, S_SO), (SRD_B, V_B, S_T0), (SRD_A, V_A, S_T1), (SRD_B, V_B, S_T2)]):
            a(f"s_add_u32 m0, s{S_W4}, {slot + i*1024}")
            a("s_nop 0")
            a(f"buffer_load_dwordx4 v{vo}, s[{srdn}:{srdn+3}], s{so} offen lds")
            vm.append(("G", gi))
        a.label(f"K1_SKIPDMA{gi}")

    XR = V_XN
    a(f"s_lshl_b32 s{S_T0}, s{S_W}, 4")
    a(f"s_lshl_b32 s{S_T1}, s{S_T}, 7")
    a(f"s_add_u32 s{S_T1}, s{S_T1}, s{S_T0}")
    a(f"s_mul_i32 s{S_T1}, s{S_T1}, 896")
    for i in range(14):
        a(f"buffer_load_dwordx4 {vr(XR+4*i,4)}, v{V_XG}, s[{SRD_X}:{SRD_X+3}], s{S_T1} offen offset:{64*i}")
    for gi in range(3):
        dma_group(gi)
    a(f"s_cmp_eq_u32 s{S_W}, 7")
    a("s_cbranch_scc1 K1_W7")
    a("s_waitcnt vmcnt(12)")
    a("s_branch K1_W7J")
    a.label("K1_W7")
    a("s_waitcnt vmcnt(0)")
    a.label("K1_W7J")
    stamp()
    SUM = [V_X + 0, V_X + 1]; SQ = [V_X + 2, V_X + 3]
    for r in SUM + SQ: a(f"v_mov_b32 v{r}, 0")
    a(f"s_mov_b32 s{S_T0}, 0x3f803f80")
    for i in range(56):
        a(f"v_dot2_f32_bf16 v{SUM[i&1]}, v{XR+i}, s{S_T0}, v{SUM[i&1]}")
        a(f"v_dot2_f32_bf16 v{SQ[i&1]}, v{XR+i}, v{XR+i}, v{SQ[i&1]}")
    a(f"v_add_f32 v{SUM[0]}, v{SUM[0]}, v{SUM[1]}")
    a(f"v_add_f32 v{SQ[0]}, v{SQ[0]}, v{SQ[1]}")
    for perm in ("[1,0,3,2]", "[2,3,0,1]"):
        a(f"v_add_f32_dpp v{SUM[0]}, v{SUM[0]}, v{SUM[0]} quad_perm:{perm} row_mask:0xf bank_mask:0xf")
        a(f"v_add_f32_dpp v{SQ[0]}, v{SQ[0]}, v{SQ[0]} quad_perm:{perm} row_mask:0xf bank_mask:0xf")
    M, VAR, RR, CC = V_X + 4, V_X + 5, V_X + 6, V_X + 7
    a(f"v_mul_f32 v{M}, 0x3b124925, v{SUM[0]}")
    a(f"v_mul_f32 v{VAR}, 0x3b124925, v{SQ[0]}")
    a(f"v_fma_f32 v{VAR}, -v{M}, v{M}, v{VAR}")
    a(f"v_max_f32 v{VAR}, 0, v{VAR}")
    def rbf(r):
        a(f"v_cvt_pk_bf16_f32 v{r}, v{r}, v{r}")
        a(f"v_lshlrev_b32 v{r}, 16, v{r}")
    rbf(M); rbf(VAR)
    a(f"v_add_f32 v{VAR}, 0x3727c5ac, v{VAR}")
    rbf(VAR)
    a(f"v_sqrt_f32 v{VAR}, v{VAR}")
    rbf(VAR)
    a(f"v_rcp_f32 v{RR}, v{VAR}")
    a(f"v_mul_f32 v{CC}, v{M}, v{RR}")
    a(f"v_sub_f32 v{CC}, 0, v{CC}")
    LO = [V_X + 8, V_X + 10]; HI = [V_X + 9, V_X + 11]
    XO = 120
    for i in range(56):
        lo, hi = LO[i & 1], HI[i & 1]
        a(f"v_lshlrev_b32 v{lo}, 16, v{XR+i}")
        a(f"v_and_b32 v{hi}, 0xffff0000, v{XR+i}")
        a(f"v_fma_f32 v{lo}, v{lo}, v{RR}, v{CC}")
        a(f"v_fma_f32 v{hi}, v{hi}, v{RR}, v{CC}")
        a(f"v_cvt_pk_bf16_f32 v{XO+i}, v{lo}, v{hi}")
    stamp()
    for i in range(7):
        a(f"ds_write_b128 v{V_XW}, {vr(XO+4*i,4)} offset:{64*i}")
    a("s_waitcnt lgkmcnt(0)")
    stamp()
    a("s_barrier")
    stamp()
    for s_ in range(14):
        a(f"ds_read_b128 {vr(V_XN+4*s_,4)}, v{V_XR} offset:{32*s_}")
    a("s_waitcnt lgkmcnt(0)")
    stamp()
    a("s_barrier")
    for i in range(7):
        a(f"ds_write_b128 v{V_XW}, {vr(XO+4*(7+i),4)} offset:{64*i}")
    a("s_waitcnt lgkmcnt(0)")
    a("s_barrier")
    for s_ in range(14):
        a(f"ds_read_b128 {vr(V_XN+4*(14+s_),4)}, v{V_XR} offset:{32*s_}")
    a("s_waitcnt lgkmcnt(0)")
    def addr_for_group(gi):
        p = gi >> 1
        ad = V_AD[gi & 1]
        slot = (gi % 5) * SLOT
        a(f"s_add_u32 s{S_T0}, s{S_5G}, {p}")
        a(f"s_cmp_ge_u32 s{S_T0}, 24")
        a(f"s_cselect_b64 s[{S_MC}:{S_MC+1}], -1, 0")
        a(f"v_cndmask_b32 v{ad[0]}, v{V_TRQ0}, v{V_TRG0}, s[{S_MC}:{S_MC+1}]")
        a(f"v_cndmask_b32 v{ad[1]}, v{V_TRQ1}, v{V_TRG1}, s[{S_MC}:{S_MC+1}]")
        if slot:
            a(f"v_add_u32 v{ad[0]}, {slot}, v{ad[0]}")
            a(f"v_add_u32 v{ad[1]}, {slot}, v{ad[1]}")

    def tr_reads(m):
        gi = m // 14; ad = V_AD[gi & 1]; b = V_WF + 4 * (m % 4); off = (m % 14) * 2048
        a(f"ds_read_b64_tr_b16 {vr(b,2)}, v{ad[0]} offset:{off}")
        a(f"ds_read_b64_tr_b16 {vr(b+2,2)}, v{ad[1]} offset:{off}")

    def wait_for(tag, extra_min=0):
        idx = max(i for i, t in enumerate(vm) if t == tag)
        n = len(vm) - 1 - idx
        a(f"s_waitcnt vmcnt({n})")

    def epi_setup(p, typ):
        o = []
        o.append(f"s_add_u32 s{S_T0}, s{S_5G}, {p}")
        if typ == "qkv":
            o.append(f"s_lshl_b32 s{S_T0}, s{S_T0}, 1")
            o.append(f"s_add_u32 s{S_T0}, s{S_T0}, s{S_TN}")
            o.append(f"s_cmp_ge_u32 s{S_T0}, 32")
            o.append(f"s_cselect_b32 s{S_T1}, 0x3f80, 0")
            o.append(f"v_mov_b32 v{V_PAD}, s{S_T1}")
            o.append(f"s_lshl_b32 s{S_T0}, s{S_T0}, 6")
            o.append(f"s_add_u32 s{S_T0}, s{S_T0}, s{S_TOK}")
            o.append(f"s_lshl_b32 s{S_STO}, s{S_T0}, 11")
        else:
            o.append(f"s_sub_u32 s{S_T0}, s{S_T0}, 24")
            o.append(f"s_lshl_b32 s{S_T0}, s{S_T0}, 1")
            o.append(f"s_add_u32 s{S_T0}, s{S_T0}, s{S_TN}")
            o.append(f"s_mul_i32 s{S_T1}, s{S_TOK}, 112")
            o.append(f"s_add_u32 s{S_T0}, s{S_T0}, s{S_T1}")
            o.append(f"s_lshl_b32 s{S_STO}, s{S_T0}, 10")
            o.append(f"s_add_u32 s{S_STO}, s{S_STO}, {WS_H}")
        return o

    def epi_body(typ):
        o = []
        if typ == "qkv":
            for e in range(8):
                o.append(f"v_cvt_pk_bf16_f32 v{V_T+e}, v{V_ACB+2*e}, v{V_ACB+2*e+1}")
            o.append(f"v_cndmask_b32 v{V_T+6}, v{V_T+6}, v{V_PAD}, s[{S_MHI}:{S_MHI+1}]")
            o.append(f"v_cndmask_b32 v{V_T+7}, v{V_T+7}, 0, s[{S_MHI}:{S_MHI+1}]")
            o.append(f"buffer_store_dwordx4 {vr(V_T,4)}, v{V_L16}, s[{SRD_WS}:{SRD_WS+3}], s{S_STO} offen")
            o.append(f"buffer_store_dwordx4 {vr(V_T+4,4)}, v{V_L16}, s[{SRD_WS}:{SRD_WS+3}], s{S_STO} offen offset:1024")
        else:
            for e in range(8):
                o.append(f"v_mul_f32 v{V_ACB+e}, v{V_ACB+e}, v{V_ACB+8+e}")
            for e in range(4):
                o.append(f"v_cvt_pk_bf16_f32 v{V_T+e}, v{V_ACB+2*e}, v{V_ACB+2*e+1}")
            o.append(f"buffer_store_dwordx4 {vr(V_T,4)}, v{V_L16}, s[{SRD_WS}:{SRD_WS+3}], s{S_STO} offen")
        return o

    def emit_step(n, extra):
        s = n % 28
        m = n + PF
        if m < 140: tr_reads(m)
        a(f"s_waitcnt lgkmcnt({2*min(PF, 139-n)})")
        C = "0" if s == 0 else vr(V_ACA, 16)
        D = vr(V_ACB, 16) if s == 27 else vr(V_ACA, 16)
        a(f"v_mfma_f32_32x32x16_bf16 {D}, {vr(V_WF+4*(n%4),4)}, {vr(V_XN+4*s,4)}, {C}")
        for x in extra: a(x)

    addr_for_group(0)
    wait_for(("G", 1))
    a("s_barrier")
    stamp()
    dma_group(3)
    dma_group(4)
    for m in range(PF): tr_reads(m)
    n = 0
    while n < 140:
        gi = n // 14
        if n % 14 == 0:
            if n > 0:
                if gi + 1 <= 9: wait_for(("G", gi + 1))
                a("s_barrier")
                a("s_waitcnt lgkmcnt(0)") if STAMP else None
                stamp()
                if gi + 4 <= 9: dma_group(gi + 4)
            if gi + 1 <= 9: addr_for_group(gi + 1)
        if n % 28 == 0 and n > 0:
            p = n // 28 - 1
            NE = 10
            a(f"s_add_u32 s{S_T0}, s{S_5G}, {p}")
            a(f"s_cmp_ge_u32 s{S_T0}, 24")
            a(f"s_cbranch_scc1 K1_GU{p}")
            vm_save = list(vm)
            for typ in ("qkv", "gu"):
                if typ == "gu": a.label(f"K1_GU{p}")
                ops = epi_setup(p, typ) + epi_body(typ)
                k = 0
                for j in range(NE):
                    ex = []
                    if j >= 3:
                        ex = ops[k:k + 4]; k += 4
                    if j == NE - 1:
                        ex += ops[k:]; k = len(ops)
                    emit_step(n + j, ex)
                if typ == "qkv": a(f"s_branch K1_JOIN{p}")
            a.label(f"K1_JOIN{p}")
            vm.append(("S", p))
            n += NE
            continue
        emit_step(n, [])
        n += 1
    stamp()
    p = 4
    a(f"s_add_u32 s{S_T0}, s{S_5G}, {p}")
    a(f"s_cmp_ge_u32 s{S_T0}, 24")
    a(f"s_cbranch_scc1 K1_GU{p}")
    for typ in ("qkv", "gu"):
        if typ == "gu": a.label(f"K1_GU{p}")
        for x in epi_setup(p, typ): a(x)
        a("s_nop 7")
        for x in epi_body(typ): a(x)
        if STAMP:
            a("s_waitcnt vmcnt(0)")
            lab[0] = typ
            save = nst[0]; stamp(); dump_stamps(); nst[0] = save
        a("s_endpgm")
    a.label("K1_END")
    a("s_endpgm")

def kernel_desc(name, vgpr, sgpr):
    acc = (vgpr + 3) // 4 * 4
    return f""".amdhsa_kernel {name}
  .amdhsa_next_free_vgpr {vgpr}
  .amdhsa_next_free_sgpr {sgpr}
  .amdhsa_accum_offset {acc}
  .amdhsa_group_segment_fixed_size 0
  .amdhsa_kernarg_size 80
  .amdhsa_user_sgpr_count 2
  .amdhsa_user_sgpr_kernarg_segment_ptr 1
  .amdhsa_system_sgpr_workgroup_id_x 1
.end_amdhsa_kernel
"""

HEADER = """; Kernarg layout for this problem (80 bytes, ptrs only, base s[0:1]):
;   offset   0: d_in[0] A_x  shape=(1, 2048, 448) dtype=bfloat16 strides=(1835008, 896, 2) contiguous=True
;   offset   8: d_in[1] A_wqkv  shape=(448, 1344) dtype=bfloat16 strides=(2688, 2) contiguous=True
;   offset  16: d_in[2] A_wo  shape=(448, 448) dtype=bfloat16 strides=(896, 2) contiguous=True
;   offset  24: d_in[3] B_x  shape=(1, 2048, 448) dtype=bfloat16 strides=(1835008, 896, 2) contiguous=True
;   offset  32: d_in[4] B_w_gate  shape=(448, 1792) dtype=bfloat16 strides=(3584, 2) contiguous=True
;   offset  40: d_in[5] B_w_up  shape=(448, 1792) dtype=bfloat16 strides=(3584, 2) contiguous=True
;   offset  48: d_in[6] B_w_down  shape=(1792, 448) dtype=bfloat16 strides=(896, 2) contiguous=True
"""

def build(kernels, path):
    txt = HEADER
    for (name, fn, grid, block, lds, vg, sg) in kernels:
        txt += f"; @launch kernel={name} grid=({grid},1,1) block=({block},1,1) lds={lds}\n"
    txt += '.amdgcn_target "amdgcn-amd-amdhsa--gfx950"\n.text\n'
    for (name, fn, grid, block, lds, vg, sg) in kernels:
        a = Asm(); fn(a)
        txt += f".globl {name}\n.p2align 8\n.type {name},@function\n{name}:\n"
        txt += "\n".join(("    " + l if not l.endswith(":") else l) for l in a.finalize()) + "\n"
    txt += '.section .rodata,"a"\n.p2align 6\n'
    for (name, fn, grid, block, lds, vg, sg) in kernels:
        txt += ".p2align 6\n" + kernel_desc(name, vg, sg)
    open(path, "w").write(txt)

if __name__ == "__main__":
    ks = [("k1_kernel", gen_k1, 256, 512, 163840, 200, 64)]
    build(ks, "k1.s")
    STAMP = True
    ks = [("k1_kernel", gen_k1, 256, 512, 163840, 200, 102)]
    build(ks, "k1st.s")
```

```python
import sys
from asmlib import Asm
from gen import vr, sr, srd, kernel_desc, HEADER, build, NAME, WS_QKV, WS_H, WS_O, WS_SIZE

class Stamper:
    def __init__(self, a, on, base=64, vtmp=(250, 251)):
        self.a, self.on, self.n, self.base = a, on, 0, base
        self.vreg = 252
    def __call__(self):
        if not self.on: return
        self.a(f"s_memtime s[100:101]")
        self.a("s_waitcnt lgkmcnt(0)")
        self.a(f"v_writelane_b32 v{self.vreg}, s100, {self.n}")
        self.n += 1
    def dump(self, wg, swave, v0, v1, tag):
        if not self.on: return
        a = self.a
        a("s_load_dwordx2 s[16:17], s[0:1], 64")
        a("s_waitcnt lgkmcnt(0)")
        a("s_mov_b32 s18, 65536")
        a("s_mov_b32 s19, 0x00020000")
        a(f"s_cmp_lg_u32 s2, {wg}")
        a(f"s_cbranch_scc1 NOST_{tag}")
        a(f"s_lshl_b32 s15, s{swave}, 7")
        a(f"v_and_b32 v{v1}, 63, v0")
        a(f"v_lshlrev_b32 v{v1}, 2, v{v1}")
        a(f"v_cmp_gt_u32 vcc, 128, v{v1}")
        a(f"s_and_saveexec_b64 s[98:99], vcc")
        a(f"buffer_store_dword v{self.vreg}, v{v1}, s[16:19], s15 offen")
        a(f"s_mov_b64 exec, s[98:99]")
        a(f"NOST_{tag}:")

STAMP = False

def gen_k1(a):
    st = Stamper(a, STAMP)
    PF = 3
    V_LANE, V_L16 = 1, 2
    V_VOFF = 3
    V_TR = 8
    V_WF = 20
    V_ACC = 36
    V_XN = 116
    V_T = 228
    V_PAD = 236
    V_X = 238
    S_W, S_TM, S_TN, S_T, S_G = 3, 33, 34, 35, 36
    S_5G, S_TOK, S_SUB, S_BLK = 37, 38, 39, 32
    S_MHI = 40
    S_M = 42
    S_SO = 44
    S_INC = 49
    S_T0, S_T1, S_T2, S_T3 = 54, 55, 56, 57
    S_M0 = 58
    S_STO = 59
    SRD_X, SRD_WS = 4, 20
    SRD_J = 60
    if STAMP: st.base = 80

    a("s_cmp_ge_u32 s2, 256")
    a("s_cbranch_scc1 K1_END")
    st()
    a("s_load_dwordx2 s[16:17], s[0:1], 0")
    a("s_load_dwordx2 s[8:9], s[0:1], 8")
    a("s_load_dwordx4 s[12:15], s[0:1], 32")
    a("s_load_dwordx2 s[10:11], s[0:1], 72")
    a(f"v_and_b32 v{V_LANE}, 63, v0")
    a(f"v_lshrrev_b32 v{V_X}, 6, v0")
    a(f"v_lshlrev_b32 v{V_L16}, 4, v{V_LANE}")
    a(f"v_readfirstlane_b32 s{S_W}, v{V_X}")
    a(f"s_and_b32 s{S_T0}, s2, 7")
    a(f"s_lshr_b32 s{S_T1}, s2, 3")
    a(f"s_and_b32 s{S_T}, s{S_T0}, 1")
    a(f"s_lshl_b32 s{S_T}, s{S_T}, 3")
    a(f"s_and_b32 s{S_T2}, s{S_T1}, 7")
    a(f"s_add_u32 s{S_T}, s{S_T}, s{S_T2}")
    a(f"s_lshr_b32 s{S_G}, s{S_T0}, 1")
    a(f"s_lshl_b32 s{S_G}, s{S_G}, 2")
    a(f"s_lshr_b32 s{S_T2}, s{S_T1}, 3")
    a(f"s_add_u32 s{S_G}, s{S_G}, s{S_T2}")
    a(f"s_mul_i32 s{S_5G}, s{S_G}, 5")
    a(f"s_and_b32 s{S_TM}, s{S_W}, 3")
    a(f"s_lshr_b32 s{S_TN}, s{S_W}, 2")
    a(f"s_and_b32 s{S_SUB}, s{S_W}, 1")
    a(f"s_lshr_b32 s{S_BLK}, s{S_W}, 1")
    a(f"s_lshl_b32 s{S_TOK}, s{S_T}, 2")
    a(f"s_add_u32 s{S_TOK}, s{S_TOK}, s{S_TM}")
    a(f"s_mov_b32 s{S_MHI}, 0")
    a(f"s_mov_b32 s{S_MHI+1}, -1")
    R, C, MH, H, MG, X0, X1, X2, TQ, TG, VQ, VG = [V_X + i for i in range(12)]
    a(f"v_bfe_u32 v{R}, v{V_LANE}, 2, 2")
    a(f"v_and_b32 v{C}, 3, v{V_LANE}")
    a(f"v_bfe_u32 v{MH}, v{V_LANE}, 4, 1")
    a(f"v_lshrrev_b32 v{H}, 5, v{V_LANE}")
    a(f"v_lshl_add_u32 v{MG}, v{MH}, 2, v{C}")
    a(f"v_and_b32 v{X0}, 1, v{MG}")
    a(f"v_lshlrev_b32 v{X0}, 2, v{X0}")
    a(f"v_lshrrev_b32 v{X1}, 1, v{MG}")
    a(f"v_or_b32 v{X0}, v{X0}, v{X1}")
    a(f"v_min_u32 v{X0}, 6, v{X0}")
    a(f"s_mul_i32 s{S_T0}, s{S_TN}, 56")
    a(f"v_lshlrev_b32 v{X0}, 3, v{X0}")
    a(f"v_add_u32 v{X0}, s{S_T0}, v{X0}")
    a(f"v_lshrrev_b32 v{X1}, 4, v{X0}")
    a(f"v_bfe_u32 v{X2}, v{R}, 1, 1")
    a(f"v_lshlrev_b32 v{X2}, 2, v{X2}")
    a(f"v_xor_b32 v{X1}, v{X1}, v{X2}")
    a(f"v_and_b32 v{X0}, 15, v{X0}")
    a(f"v_lshl_add_u32 v{X0}, v{X1}, 4, v{X0}")
    a(f"v_lshl_add_u32 v{X2}, v{H}, 3, v{R}")
    a(f"v_lshl_add_u32 v{TQ}, v{X2}, 7, v{X0}")
    a(f"s_lshl_b32 s{S_T0}, s{S_TN}, 1")
    a(f"v_and_b32 v{X0}, 1, v{C}")
    a(f"v_add_u32 v{X0}, s{S_T0}, v{X0}")
    a(f"v_lshlrev_b32 v{X1}, 1, v{MH}")
    a(f"v_xor_b32 v{X0}, v{X0}, v{X1}")
    a(f"v_lshlrev_b32 v{X0}, 4, v{X0}")
    a(f"v_lshrrev_b32 v{X1}, 1, v{C}")
    a(f"v_lshl_add_u32 v{X0}, v{X1}, 3, v{X0}")
    a(f"v_lshl_add_u32 v{X0}, v{X2}, 6, v{X0}")
    a(f"v_lshl_add_u32 v{TG}, v{MH}, 10, v{X0}")
    a(f"v_lshrrev_b32 v{X0}, 3, v{V_LANE}")
    a(f"v_and_b32 v{X1}, 7, v{V_LANE}")
    a(f"v_bfe_u32 v{X2}, v{V_LANE}, 4, 1")
    a(f"v_lshlrev_b32 v{X2}, 2, v{X2}")
    a(f"v_xor_b32 v{X1}, v{X1}, v{X2}")
    a(f"v_lshlrev_b32 v{X1}, 4, v{X1}")
    a(f"s_movk_i32 s{S_T0}, 2688")
    a(f"v_mad_u32_u24 v{VQ}, v{X0}, s{S_T0}, v{X1}")
    a(f"v_lshrrev_b32 v{X0}, 2, v{V_LANE}")
    a(f"v_lshlrev_b32 v{X1}, 4, v{C}")
    a(f"s_movk_i32 s{S_T0}, 3584")
    a(f"v_mad_u32_u24 v{VG}, v{X0}, s{S_T0}, v{X1}")
    a(f"s_lshl_b32 s{S_T0}, s{S_SUB}, 5")
    a(f"v_xor_b32 v{VG}, s{S_T0}, v{VG}")
    V_XG, V_XW, V_XR = 20, 21, 22
    a(f"v_lshrrev_b32 v{X0}, 2, v{V_LANE}")
    a(f"s_movk_i32 s{S_T0}, 896")
    a(f"v_lshlrev_b32 v{X1}, 4, v{C}")
    a(f"v_mad_u32_u24 v{V_XG}, v{X0}, s{S_T0}, v{X1}")
    a(f"s_lshl_b32 s{S_T1}, s{S_SUB}, 4")
    a(f"v_add_u32 v{X0}, s{S_T1}, v{X0}")
    a(f"s_movk_i32 s{S_T0}, 464")
    a(f"v_mad_u32_u24 v{V_XW}, v{X0}, s{S_T0}, v{X1}")
    a(f"s_lshl_b32 s{S_T1}, s{S_BLK}, 15")
    a(f"s_add_u32 s{S_T1}, s{S_T1}, 16384")
    a(f"v_add_u32 v{V_XW}, s{S_T1}, v{V_XW}")
    a(f"v_and_b32 v{X0}, 31, v{V_LANE}")
    a(f"v_lshlrev_b32 v{X1}, 4, v{H}")
    a(f"v_mad_u32_u24 v{V_XR}, v{X0}, s{S_T0}, v{X1}")
    a(f"s_lshl_b32 s{S_T1}, s{S_TM}, 15")
    a(f"s_add_u32 s{S_T1}, s{S_T1}, 16384")
    a(f"v_add_u32 v{V_XR}, s{S_T1}, v{V_XR}")
    a(f"s_lshl_b32 s{S_M0}, s{S_W}, 10")
    a("s_waitcnt lgkmcnt(0)")
    st()
    srd(a, SRD_X, 16, 1835008)
    srd(a, SRD_WS, 10, WS_SIZE)
    XR = V_XN
    a(f"s_lshl_b32 s{S_T0}, s{S_W}, 4")
    a(f"s_lshl_b32 s{S_T1}, s{S_T}, 7")
    a(f"s_add_u32 s{S_T1}, s{S_T1}, s{S_T0}")
    a(f"s_mul_i32 s{S_T1}, s{S_T1}, 896")
    for i in range(14):
        a(f"buffer_load_dwordx4 {vr(XR+4*i,4)}, v{V_XG}, s[{SRD_X}:{SRD_X+3}], s{S_T1} offen offset:{64*i}")
    a(f"s_cmp_eq_u32 s{S_SUB}, 1")
    a("s_cselect_b64 s[18:19], s[14:15], s[12:13]")
    a(f"s_mul_i32 s{S_T2}, s{S_BLK}, 57344")
    a(f"s_mul_i32 s{S_T3}, s{S_BLK}, 43008")
    a(f"s_mul_i32 s{S_T0}, s{S_SUB}, 21504")
    a(f"s_add_u32 s{S_T3}, s{S_T3}, s{S_T0}")
    a("s_mov_b32 s30, 1204224")
    a("s_mov_b32 s31, 172032")
    a("s_mov_b32 s29, 512")
    for j in range(5):
        sj = SRD_J + 4 * j
        a(f"s_add_u32 s{S_T0}, s{S_5G}, {j}")
        a(f"s_lshl_b32 s{S_T1}, s{S_T0}, 6")
        a(f"s_add_u32 s{S_T1}, s{S_T1}, s{S_T2}")
        a(f"s_sub_u32 s{S_STO}, s{S_T0}, 56")
        a(f"s_mul_i32 s{S_STO}, s{S_STO}, 112")
        a(f"s_add_u32 s{S_STO}, s{S_STO}, s{S_T3}")
        a(f"s_cmp_lt_u32 s{S_T0}, 56")
        a(f"s_cselect_b64 s[{sj}:{sj+1}], s[18:19], s[8:9]")
        a(f"s_cselect_b32 s{sj+2}, 1605632, s30")
        a(f"s_mov_b32 s{sj+3}, 0x00020000")
        a(f"s_cselect_b32 s{S_SO+j}, s{S_T1}, s{S_STO}")
        a(f"s_cselect_b32 s{S_INC+j}, 229376, s31")
        a(f"s_cselect_b64 s[{S_M}:{S_M+1}], -1, 0")
        a(f"v_cndmask_b32 v{V_VOFF+j}, v{VQ}, v{VG}, s[{S_M}:{S_M+1}]")
        a(f"v_cndmask_b32 v{V_TR+2*j}, v{TQ}, v{TG}, s[{S_M}:{S_M+1}]")
        a(f"s_cselect_b32 s{S_T1}, 256, s29")
        a(f"v_add_u32 v{V_TR+2*j}, {j*32768}, v{V_TR+2*j}")
        a(f"v_add_u32 v{V_TR+2*j+1}, s{S_T1}, v{V_TR+2*j}")
    a("s_barrier")

    def dma_group(g):
        slot = g % 4
        for j in range(5):
            sj = SRD_J + 4 * j
            a(f"s_add_u32 m0, s{S_M0}, {j*32768 + slot*8192}")
            a("s_nop 0")
            a(f"buffer_load_dwordx4 v{V_VOFF+j}, s[{sj}:{sj+3}], s{S_SO+j} offen lds")
            a(f"s_add_u32 s{S_SO+j}, s{S_SO+j}, s{S_INC+j}")
    dma_group(0); dma_group(1)
    a("s_waitcnt vmcnt(10)")
    st()
    SUM = [V_X + 0, V_X + 1]; SQ = [V_X + 2, V_X + 3]
    for r in SUM + SQ: a(f"v_mov_b32 v{r}, 0")
    a(f"s_mov_b32 s{S_T0}, 0x3f803f80")
    for i in range(56):
        a(f"v_dot2_f32_bf16 v{SUM[i&1]}, v{XR+i}, s{S_T0}, v{SUM[i&1]}")
        a(f"v_dot2_f32_bf16 v{SQ[i&1]}, v{XR+i}, v{XR+i}, v{SQ[i&1]}")
    a(f"v_add_f32 v{SUM[0]}, v{SUM[0]}, v{SUM[1]}")
    a(f"v_add_f32 v{SQ[0]}, v{SQ[0]}, v{SQ[1]}")
    for perm in ("[1,0,3,2]", "[2,3,0,1]"):
        a(f"v_add_f32_dpp v{SUM[0]}, v{SUM[0]}, v{SUM[0]} quad_perm:{perm} row_mask:0xf bank_mask:0xf")
        a(f"v_add_f32_dpp v{SQ[0]}, v{SQ[0]}, v{SQ[0]} quad_perm:{perm} row_mask:0xf bank_mask:0xf")
    M, VAR, RR, CC = V_X + 4, V_X + 5, V_X + 6, V_X + 7
    a(f"v_mul_f32 v{M}, 0x3b124925, v{SUM[0]}")
    a(f"v_mul_f32 v{VAR}, 0x3b124925, v{SQ[0]}")
    a(f"v_fma_f32 v{VAR}, -v{M}, v{M}, v{VAR}")
    a(f"v_max_f32 v{VAR}, 0, v{VAR}")
    def rbf(r):
        a(f"v_cvt_pk_bf16_f32 v{r}, v{r}, v{r}")
        a(f"v_lshlrev_b32 v{r}, 16, v{r}")
    rbf(M); rbf(VAR)
    a(f"v_add_f32 v{VAR}, 0x3727c5ac, v{VAR}")
    rbf(VAR)
    a(f"v_sqrt_f32 v{VAR}, v{VAR}")
    rbf(VAR)
    a(f"v_rcp_f32 v{RR}, v{VAR}")
    a(f"v_mul_f32 v{CC}, v{M}, v{RR}")
    a(f"v_sub_f32 v{CC}, 0, v{CC}")
    LO = [V_X + 8, V_X + 10]; HI = [V_X + 9, V_X + 11]
    XO = V_XN + 56
    for i in range(56):
        lo, hi = LO[i & 1], HI[i & 1]
        a(f"v_lshlrev_b32 v{lo}, 16, v{XR+i}")
        a(f"v_and_b32 v{hi}, 0xffff0000, v{XR+i}")
        a(f"v_fma_f32 v{lo}, v{lo}, v{RR}, v{CC}")
        a(f"v_fma_f32 v{hi}, v{hi}, v{RR}, v{CC}")
        a(f"v_cvt_pk_bf16_f32 v{XO+i}, v{lo}, v{hi}")
        if i == 27:
            for ii in range(7):
                a(f"ds_write_b128 v{V_XW}, {vr(XO+4*ii,4)} offset:{64*ii}")
    st()
    a("s_waitcnt lgkmcnt(0)")
    a("s_barrier")
    for s_ in range(14):
        a(f"ds_read_b128 {vr(V_XN+4*s_,4)}, v{V_XR} offset:{32*s_}")
    a("s_waitcnt lgkmcnt(0)")
    a("s_barrier")
    for i in range(7):
        a(f"ds_write_b128 v{V_XW}, {vr(XO+4*(7+i),4)} offset:{64*i}")
    a("s_waitcnt lgkmcnt(0)")
    a("s_barrier")
    for s_ in range(14):
        a(f"ds_read_b128 {vr(V_XN+4*(14+s_),4)}, v{V_XR} offset:{32*s_}")
    a("s_waitcnt lgkmcnt(0) vmcnt(0)")
    st()
    a("s_barrier")
    st()
    dma_group(2); dma_group(3)

    def tr_reads(m):
        s, j = m // 5, m % 5
        g, b = s // 4, s % 4
        off = (g % 4) * 8192 + b * 2048
        w = V_WF + 4 * (m % 4)
        a(f"ds_read_b64_tr_b16 {vr(w,2)}, v{V_TR+2*j} offset:{off}")
        a(f"ds_read_b64_tr_b16 {vr(w+2,2)}, v{V_TR+2*j+1} offset:{off}")

    for m in range(PF): tr_reads(m)
    for n in range(140):
        s, j = n // 5, n % 5
        g = s // 4
        if n % 20 == 0 and n > 0:
            a(f"s_waitcnt vmcnt({5 if g + 2 <= 6 else 0})")
            a("s_barrier")
            st()
            if g + 3 <= 6: dma_group(g + 3)
        m = n + PF
        if m < 140: tr_reads(m)
        a(f"s_waitcnt lgkmcnt({2*min(PF, 139-n)})")
        acc = vr(V_ACC + 16 * j, 16)
        a(f"v_mfma_f32_32x32x16_bf16 {acc}, {vr(V_WF+4*(n%4),4)}, {vr(V_XN+4*s,4)}, {'0' if s == 0 else acc}")
    st()
    for j in range(5):
        A = V_ACC + 16 * j
        T = V_T if j % 2 == 0 else V_WF
        a(f"s_add_u32 s{S_T0}, s{S_5G}, {j}")
        a(f"s_cmp_lt_u32 s{S_T0}, 56")
        a(f"s_cbranch_scc1 K1_EGU{j}")
        a(f"s_sub_u32 s{S_T0}, s{S_T0}, 56")
        a(f"s_lshl_b32 s{S_T0}, s{S_T0}, 1")
        a(f"s_add_u32 s{S_T0}, s{S_T0}, s{S_TN}")
        a(f"s_cmp_ge_u32 s{S_T0}, 32")
        a(f"s_cselect_b32 s{S_T1}, 0x3f80, 0")
        a(f"v_mov_b32 v{V_PAD}, s{S_T1}")
        a(f"s_lshl_b32 s{S_T0}, s{S_T0}, 6")
        a(f"s_add_u32 s{S_T0}, s{S_T0}, s{S_TOK}")
        a(f"s_lshl_b32 s{S_STO}, s{S_T0}, 11")
        a("s_nop 4")
        for e in range(8):
            a(f"v_cvt_pk_bf16_f32 v{T+e}, v{A+2*e}, v{A+2*e+1}")
        a(f"v_cndmask_b32 v{T+6}, v{T+6}, v{V_PAD}, s[{S_MHI}:{S_MHI+1}]")
        a(f"v_cndmask_b32 v{T+7}, v{T+7}, 0, s[{S_MHI}:{S_MHI+1}]")
        a(f"buffer_store_dwordx4 {vr(T,4)}, v{V_L16}, s[{SRD_WS}:{SRD_WS+3}], s{S_STO} offen")
        a(f"buffer_store_dwordx4 {vr(T+4,4)}, v{V_L16}, s[{SRD_WS}:{SRD_WS+3}], s{S_STO} offen offset:1024")
        a(f"s_branch K1_EJ{j}")
        a.label(f"K1_EGU{j}")
        a(f"s_lshl_b32 s{S_T0}, s{S_T0}, 1")
        a(f"s_add_u32 s{S_T0}, s{S_T0}, s{S_TN}")
        a(f"s_mul_i32 s{S_T1}, s{S_TOK}, 112")
        a(f"s_add_u32 s{S_T0}, s{S_T0}, s{S_T1}")
        a(f"s_lshl_b32 s{S_STO}, s{S_T0}, 10")
        a(f"s_add_u32 s{S_STO}, s{S_STO}, {WS_H}")
        a("s_nop 6")
        for e in range(8):
            a(f"v_mul_f32 v{A+e}, v{A+e}, v{A+8+e}")
        for e in range(4):
            a(f"v_cvt_pk_bf16_f32 v{T+e}, v{A+2*e}, v{A+2*e+1}")
        a(f"buffer_store_dwordx4 {vr(T,4)}, v{V_L16}, s[{SRD_WS}:{SRD_WS+3}], s{S_STO} offen")
        a.label(f"K1_EJ{j}")
    if STAMP:
        a("s_waitcnt vmcnt(0)")
        st()
        st.dump(37, S_W, 240, 241, "k1")
    a.label("K1_END")
    a("s_endpgm")

if __name__ == "__main__":
    build([("k1_kernel", gen_k1, 256, 512, 163840, 252, 102)], "k1.s")
    STAMP = True
    build([("k1_kernel", gen_k1, 256, 512, 163840, 256, 102)], "k1st.s")
```

```python
from asmlib import Asm
from gen import vr, sr, srd, kernel_desc, HEADER, build, NAME, WS_QKV, WS_H, WS_O, WS_SIZE
import gen2
from gen2 import Stamper

STAMP = False

def gen_k2(a):
    st = Stamper(a, STAMP)
    V_LANE, V_L16, V_VV, V_TRV, V_T = 1, 2, 3, 4, 5
    V_X = 6
    V_Q = 16
    V_KF = 24
    V_VF = 40
    V_O = 56
    V_P = 72
    V_S = 96
    S_W, S_HD, S_T4, S_QB = 3, 33, 34, 35
    S_T0, S_T1, S_T2, S_T3 = 36, 37, 38, 39
    S_MHI = 40
    SRD_WS = 4
    a("s_cmp_ge_u32 s2, 256")
    a("s_cbranch_scc1 K2_END")
    st()
    a("s_load_dwordx2 s[10:11], s[0:1], 72")
    a(f"v_and_b32 v{V_LANE}, 63, v0")
    a(f"v_lshrrev_b32 v{V_X}, 6, v0")
    a(f"v_lshlrev_b32 v{V_L16}, 4, v{V_LANE}")
    a(f"v_readfirstlane_b32 s{S_W}, v{V_X}")
    a(f"s_and_b32 s{S_HD}, s2, 15")
    a(f"s_lshr_b32 s{S_T4}, s2, 4")
    a(f"s_lshl_b32 s{S_QB}, s{S_T4}, 2")
    a(f"s_add_u32 s{S_QB}, s{S_QB}, s{S_W}")
    a(f"s_mov_b32 s{S_MHI}, 0")
    a(f"s_mov_b32 s{S_MHI+1}, -1")
    R, C, MH, H, X0, X1 = [V_X + i for i in range(6)]
    a(f"v_bfe_u32 v{R}, v{V_LANE}, 2, 2")
    a(f"v_and_b32 v{C}, 3, v{V_LANE}")
    a(f"v_bfe_u32 v{MH}, v{V_LANE}, 4, 1")
    a(f"v_lshrrev_b32 v{H}, 5, v{V_LANE}")
    a(f"v_and_b32 v{X0}, 1, v{C}")
    a(f"v_lshlrev_b32 v{X0}, 10, v{X0}")
    a(f"v_lshrrev_b32 v{X1}, 1, v{C}")
    a(f"v_lshl_add_u32 v{X0}, v{X1}, 9, v{X0}")
    a(f"v_lshrrev_b32 v{X1}, 2, v{V_LANE}")
    a(f"v_lshl_add_u32 v{V_VV}, v{X1}, 4, v{X0}")
    a(f"v_and_b32 v{X0}, 1, v{C}")
    a(f"v_lshlrev_b32 v{X0}, 1, v{X0}")
    a(f"v_lshl_add_u32 v{X0}, v{MH}, 2, v{X0}")
    a(f"v_lshrrev_b32 v{X1}, 1, v{C}")
    a(f"v_add_u32 v{X0}, v{X0}, v{X1}")
    a(f"v_lshlrev_b32 v{X0}, 3, v{X0}")
    a(f"v_lshl_add_u32 v{X1}, v{H}, 2, v{R}")
    a(f"v_lshl_add_u32 v{X0}, v{X1}, 6, v{X0}")
    a(f"s_lshl_b32 s{S_T0}, s{S_W}, 12")
    a(f"s_add_u32 s{S_T1}, s{S_T0}, 2048")
    a(f"v_add_u32 v{V_TRV}, s{S_T1}, v{X0}")
    V_KA = 12
    a(f"v_add_u32 v{V_KA}, s{S_T0}, v{V_L16}")
    a(f"v_and_b32 v{X0}, 31, v{V_LANE}")
    a(f"v_lshlrev_b32 v{X1}, 2, v{H}")
    a(f"v_sub_u32 v{V_T}, v{X0}, v{X1}")
    a("s_waitcnt lgkmcnt(0)")
    srd(a, SRD_WS, 10, WS_SIZE)
    a(f"s_lshl_b32 s{S_T0}, s{S_HD}, 6")
    a(f"s_add_u32 s{S_T0}, s{S_T0}, s{S_QB}")
    a(f"s_lshl_b32 s{S_T0}, s{S_T0}, 11")
    a(f"buffer_load_dwordx4 {vr(V_Q,4)}, v{V_L16}, s[{SRD_WS}:{SRD_WS+3}], s{S_T0} offen")
    a(f"buffer_load_dwordx4 {vr(V_Q+4,4)}, v{V_L16}, s[{SRD_WS}:{SRD_WS+3}], s{S_T0} offen offset:1024")
    for u in range(3):
        a(f"s_lshl_b32 s{S_T0}, s{S_T4}, 2")
        a(f"s_add_u32 s{S_T0}, s{S_T0}, s{S_W}")
        a(f"s_add_i32 s{S_T0}, s{S_T0}, {4*u - 8}")
        a(f"s_max_i32 s{S_T0}, s{S_T0}, 0")
        a(f"s_lshl_b32 s{S_T1}, s{S_HD}, 6")
        a(f"s_add_u32 s{S_T0}, s{S_T0}, s{S_T1}")
        a(f"s_lshl_b32 s{S_T0}, s{S_T0}, 11")
        a(f"s_add_u32 s{S_T1}, s{S_T0}, {16*64*2048}")
        a(f"s_add_u32 s{S_T2}, s{S_T0}, {32*64*2048}")
        a(f"s_lshl_b32 s{S_T3}, s{S_W}, 12")
        a(f"s_add_u32 s{S_T3}, s{S_T3}, {u*16384}")
        a(f"s_mov_b32 m0, s{S_T3}")
        a("s_nop 0")
        a(f"buffer_load_dwordx4 v{V_L16}, s[{SRD_WS}:{SRD_WS+3}], s{S_T1} offen lds")
        a(f"buffer_load_dwordx4 v{V_L16}, s[{SRD_WS}:{SRD_WS+3}], s{S_T1} offen offset:1024 lds")
        a(f"s_add_u32 m0, s{S_T3}, 2048")
        a("s_nop 0")
        a(f"buffer_load_dwordx4 v{V_VV}, s[{SRD_WS}:{SRD_WS+3}], s{S_T2} offen lds")
        a(f"s_add_u32 m0, s{S_T3}, 3072")
        a(f"s_add_u32 s{S_T2}, s{S_T2}, 256")
        a(f"buffer_load_dwordx4 v{V_VV}, s[{SRD_WS}:{SRD_WS+3}], s{S_T2} offen lds")
    a("s_waitcnt vmcnt(0)")
    a("s_barrier")
    st()
    NEG = "0xf149f2ca"
    def kread(j):
        b = V_KF + 8 * (j & 1)
        a(f"ds_read_b128 {vr(b,4)}, v{V_KA} offset:{j*4096}")
        a(f"ds_read_b128 {vr(b+4,4)}, v{V_KA} offset:{j*4096+1024}")
    kread(0)
    for j in range(9):
        if j + 1 < 9:
            kread(j + 1); a("s_waitcnt lgkmcnt(2)")
        else:
            a("s_waitcnt lgkmcnt(0)")
        b = V_KF + 8 * (j & 1); S = vr(V_S + 16 * j, 16)
        a(f"v_mfma_f32_32x32x16_bf16 {S}, {vr(b,4)}, {vr(V_Q,4)}, 0")
        a(f"v_mfma_f32_32x32x16_bf16 {S}, {vr(b+4,4)}, {vr(V_Q+4,4)}, {S}")
    a(f"s_cmp_ge_u32 s{S_QB}, 8")
    a("s_cbranch_scc1 K2_NOINV")
    a("s_nop 15")
    for j in range(8):
        a(f"s_add_u32 s{S_T0}, s{S_QB}, {j}")
        a(f"s_cmp_ge_u32 s{S_T0}, 8")
        a(f"s_cbranch_scc1 K2_NOINV2")
        for r in range(16): a(f"v_mov_b32 v{V_S+16*j+r}, {NEG}")
    a.label("K2_NOINV2")
    a.label("K2_NOINV")
    a(f"v_mov_b32 v{V_X}, {NEG}")
    for r in range(16):
        cc = 8 * (r >> 2) + (r & 3)
        sp = 44 + 2 * (r % 4)
        a(f"v_cmp_lt_i32 s[{sp}:{sp+1}], v{V_T}, {cc}")
        if r >= 2:
            rr = r - 2; sq = 44 + 2 * (rr % 4)
            a(f"v_cndmask_b32 v{V_S+rr}, v{V_X}, v{V_S+rr}, s[{sq}:{sq+1}]")
            a(f"v_cndmask_b32 v{V_S+128+rr}, v{V_S+128+rr}, v{V_X}, s[{sq}:{sq+1}]")
    for rr in (14, 15):
        sq = 44 + 2 * (rr % 4)
        a(f"v_cndmask_b32 v{V_S+rr}, v{V_X}, v{V_S+rr}, s[{sq}:{sq+1}]")
        a(f"v_cndmask_b32 v{V_S+128+rr}, v{V_S+128+rr}, v{V_X}, s[{sq}:{sq+1}]")
    MX = [V_X + 1, V_X + 2, V_X + 3, V_X + 4]
    for i in range(4):
        a(f"v_max_f32 v{MX[i]}, v{V_S+i}, v{V_S+4+i}")
    for i in range(8, 144, 8):
        for q in range(4):
            a(f"v_max3_f32 v{MX[q]}, v{MX[q]}, v{V_S+i+q}, v{V_S+i+4+q}")
    a(f"v_max3_f32 v{MX[0]}, v{MX[0]}, v{MX[1]}, v{MX[2]}")
    a(f"v_max_f32 v{MX[0]}, v{MX[0]}, v{MX[3]}")
    a(f"v_mov_b32 v{MX[1]}, v{MX[0]}")
    a(f"v_permlane32_swap_b32 v{MX[0]}, v{MX[1]}")
    a(f"v_max_f32 v{MX[0]}, v{MX[0]}, v{MX[1]}")
    CS = 0.18898223650461362 * 1.4426950408889634
    import struct
    cbits = struct.unpack("<I", struct.pack("<f", CS))[0]
    a(f"s_mov_b32 s{S_T0}, {cbits:#x}")
    NM = V_X + 5
    a(f"v_mul_f32 v{NM}, s{S_T0}, v{MX[0]}")
    a(f"v_sub_f32 v{NM}, 0, v{NM}")
    st()
    def vread(j, sp):
        b = V_VF + 4 * ((2 * j + sp) % 4)
        off = j * 4096 + sp * 1024
        a(f"ds_read_b64_tr_b16 {vr(b,2)}, v{V_TRV} offset:{off}")
        a(f"ds_read_b64_tr_b16 {vr(b+2,2)}, v{V_TRV} offset:{off+512}")
    vread(0, 0); vread(0, 1)
    for j in range(9):
        for sp in range(2):
            n = 2 * j + sp
            S = V_S + 16 * j + 8 * sp
            P = V_P + 8 * 0 + 4 * (n % 2)
            P = V_P + 4 * (n % 4)
            for r in range(8): a(f"v_fma_f32 v{S+r}, v{S+r}, s{S_T0}, v{NM}")
            for r in range(8): a(f"v_exp_f32 v{S+r}, v{S+r}")
            for r in range(4): a(f"v_cvt_pk_bf16_f32 v{P+r}, v{S+2*r}, v{S+2*r+1}")
            m = n + 2
            if m < 18:
                vread(m // 2, m % 2); a("s_waitcnt lgkmcnt(4)")
            elif m == 18: a("s_waitcnt lgkmcnt(2)")
            else: a("s_waitcnt lgkmcnt(0)")
            b = V_VF + 4 * (n % 4)
            a(f"v_mfma_f32_32x32x16_bf16 {vr(V_O,16)}, {vr(b,4)}, {vr(P,4)}, {'0' if n == 0 else vr(V_O,16)}")
    st()
    L0, L1, RI, RP = V_X, V_X + 1, V_X + 2, V_X + 3
    a("s_nop 7")
    a(f"v_mov_b32 v{L0}, v{V_O+12}")
    a(f"v_mov_b32 v{L1}, v{V_O+12}")
    a(f"v_permlane32_swap_b32 v{L0}, v{L1}")
    a(f"v_rcp_f32 v{RI}, v{L1}")
    a(f"v_cndmask_b32 v{RP}, v{RI}, 0, s[{S_MHI}:{S_MHI+1}]")
    for r in range(16):
        a(f"v_mul_f32 v{V_O+r}, v{V_O+r}, v{RI if r < 12 else RP}")
    for r in range(8):
        a(f"v_cvt_pk_bf16_f32 v{V_P+r}, v{V_O+2*r}, v{V_O+2*r+1}")
    a(f"s_lshl_b32 s{S_T0}, s{S_QB}, 4")
    a(f"s_add_u32 s{S_T0}, s{S_T0}, s{S_HD}")
    a(f"s_lshl_b32 s{S_T0}, s{S_T0}, 11")
    a(f"s_add_u32 s{S_T0}, s{S_T0}, {WS_O}")
    a(f"buffer_store_dwordx4 {vr(V_P,4)}, v{V_L16}, s[{SRD_WS}:{SRD_WS+3}], s{S_T0} offen")
    a(f"buffer_store_dwordx4 {vr(V_P+4,4)}, v{V_L16}, s[{SRD_WS}:{SRD_WS+3}], s{S_T0} offen offset:1024")
    if STAMP:
        a("s_waitcnt vmcnt(0)")
        st()
        st.dump(37, S_W, 240, 241, "k2")
    a.label("K2_END")
    a("s_endpgm")

def gen_k3(a):
    st = Stamper(a, STAMP)
    D = 8
    V_LANE, V_L16, V_WV, V_TR = 1, 2, 3, 4
    V_X = 8
    V_WF = 24
    V_BF = 40
    V_DN = 104
    V_SS = 168
    S_W, S_TB, S_FB = 3, 33, 34
    S_T0, S_T1, S_T2, S_T3 = 36, 37, 38, 39
    S_WO, S_BO, S_L0 = 40, 41, 42
    SRD_WS, SRD_WD, SRD_WOO, SRD_X, SRD_OUT = 4, 8, 12, 16, 20
    a("s_cmp_ge_u32 s2, 224")
    a("s_cbranch_scc1 K3_END")
    st()
    a("s_load_dwordx2 s[24:25], s[0:1], 72")
    a("s_load_dwordx2 s[26:27], s[0:1], 48")
    a("s_load_dwordx2 s[28:29], s[0:1], 16")
    a("s_load_dwordx2 s[30:31], s[0:1], 0")
    a("s_load_dwordx2 s[44:45], s[0:1], 56")
    a(f"v_and_b32 v{V_LANE}, 63, v0")
    a(f"v_lshrrev_b32 v{V_X}, 6, v0")
    a(f"v_lshlrev_b32 v{V_L16}, 4, v{V_LANE}")
    a(f"v_readfirstlane_b32 s{S_W}, v{V_X}")
    a(f"s_and_b32 s{S_T0}, s2, 7")
    a(f"s_lshr_b32 s{S_T1}, s2, 3")
    a(f"s_lshl_b32 s{S_TB}, s{S_T0}, 2")
    a(f"s_and_b32 s{S_T2}, s{S_T1}, 3")
    a(f"s_add_u32 s{S_TB}, s{S_TB}, s{S_T2}")
    a(f"s_lshr_b32 s{S_FB}, s{S_T1}, 2")
    R, C, MH, H, MG, X0, X1, X2 = [V_X + i for i in range(8)]
    a(f"v_bfe_u32 v{R}, v{V_LANE}, 2, 2")
    a(f"v_and_b32 v{C}, 3, v{V_LANE}")
    a(f"v_bfe_u32 v{MH}, v{V_LANE}, 4, 1")
    a(f"v_lshrrev_b32 v{H}, 5, v{V_LANE}")
    a(f"v_lshl_add_u32 v{MG}, v{MH}, 2, v{C}")
    a(f"v_and_b32 v{X0}, 1, v{MG}")
    a(f"v_lshlrev_b32 v{X0}, 2, v{X0}")
    a(f"v_lshrrev_b32 v{X1}, 1, v{MG}")
    a(f"v_or_b32 v{X0}, v{X0}, v{X1}")
    a(f"v_lshlrev_b32 v{X0}, 3, v{X0}")
    a(f"v_bfe_u32 v{X2}, v{R}, 1, 1")
    a(f"v_lshlrev_b32 v{X2}, 6, v{X2}")
    a(f"v_xor_b32 v{X0}, v{X0}, v{X2}")
    a(f"v_lshl_add_u32 v{X1}, v{H}, 3, v{R}")
    a(f"v_lshl_add_u32 v{X0}, v{X1}, 7, v{X0}")
    a(f"s_lshl_b32 s{S_L0}, s{S_W}, 14")
    a(f"v_add_u32 v{V_TR}, s{S_L0}, v{X0}")
    a(f"v_add_u32 v{V_TR+1}, 512, v{V_TR}")
    a(f"v_xor_b32 v{V_TR+2}, 64, v{V_TR}")
    a(f"v_xor_b32 v{V_TR+3}, 64, v{V_TR+1}")
    a(f"v_lshrrev_b32 v{X0}, 3, v{V_LANE}")
    a(f"v_and_b32 v{X1}, 7, v{V_LANE}")
    a(f"v_bfe_u32 v{X2}, v{V_LANE}, 4, 1")
    a(f"v_lshlrev_b32 v{X2}, 2, v{X2}")
    a(f"v_xor_b32 v{X1}, v{X1}, v{X2}")
    a(f"v_lshlrev_b32 v{X1}, 4, v{X1}")
    a(f"s_movk_i32 s{S_T0}, 896")
    a(f"v_mad_u32_u24 v{V_WV}, v{X0}, s{S_T0}, v{X1}")
    a("s_waitcnt lgkmcnt(0)")
    srd(a, SRD_WS, 24, WS_SIZE)
    srd(a, SRD_WD, 26, 1605632)
    srd(a, SRD_WOO, 28, 401408)
    srd(a, SRD_X, 30, 1835008)
    srd(a, SRD_OUT, 44, 1835008)
    a(f"s_mul_i32 s{S_WO}, s{S_W}, {28*16*896}")
    a(f"s_lshl_b32 s{S_T0}, s{S_FB}, 7")
    a(f"s_add_u32 s{S_WO}, s{S_WO}, s{S_T0}")
    a(f"s_lshl_b32 s{S_T1}, s{S_TB}, 1")
    a(f"s_mul_i32 s{S_BO}, s{S_T1}, 112")
    a(f"s_mul_i32 s{S_T2}, s{S_W}, 28")
    a(f"s_add_u32 s{S_BO}, s{S_BO}, s{S_T2}")
    a(f"s_lshl_b32 s{S_BO}, s{S_BO}, 10")
    a(f"s_add_u32 s{S_BO}, s{S_BO}, {WS_H}")
    NS = 36
    def issue(n):
        slot = n % D
        if n == 28:
            a(f"s_mul_i32 s{S_WO}, s{S_W}, {112*896}")
            a(f"s_lshl_b32 s{S_T0}, s{S_FB}, 7")
            a(f"s_add_u32 s{S_WO}, s{S_WO}, s{S_T0}")
            a(f"s_lshl_b32 s{S_BO}, s{S_TB}, 16")
            a(f"s_lshl_b32 s{S_T0}, s{S_W}, 13")
            a(f"s_add_u32 s{S_BO}, s{S_BO}, s{S_T0}")
            a(f"s_add_u32 s{S_BO}, s{S_BO}, {WS_O}")
        wsrd = SRD_WD if n < 28 else SRD_WOO
        a(f"s_add_u32 m0, s{S_L0}, {slot*2048}")
        a(f"s_add_u32 s{S_T0}, s{S_WO}, {8*896}")
        a(f"buffer_load_dwordx4 v{V_WV}, s[{wsrd}:{wsrd+3}], s{S_WO} offen lds")
        a(f"s_add_u32 m0, s{S_L0}, {slot*2048+1024}")
        a("s_nop 0")
        a(f"buffer_load_dwordx4 v{V_WV}, s[{wsrd}:{wsrd+3}], s{S_T0} offen lds")
        b = V_BF + 8 * slot
        a(f"buffer_load_dwordx4 {vr(b,4)}, v{V_L16}, s[{SRD_WS}:{SRD_WS+3}], s{S_BO} offen")
        th1 = 112 * 1024 if n < 28 else 32768
        a(f"s_add_u32 s{S_T0}, s{S_BO}, {th1}")
        a(f"buffer_load_dwordx4 {vr(b+4,4)}, v{V_L16}, s[{SRD_WS}:{SRD_WS+3}], s{S_T0} offen")
        if n < 28:
            a(f"s_add_u32 s{S_WO}, s{S_WO}, {16*896}")
        else:
            u = n - 28
            a(f"s_add_u32 s{S_WO}, s{S_WO}, {16*896 if u % 2 == 0 else 12*896}")
        a(f"s_add_u32 s{S_BO}, s{S_BO}, 1024")
    for n in range(D - 1): issue(n)
    st()
    def trread(n):
        slot = n % D; w = V_WF + 8 * (n % 2)
        for ft in range(2):
            a(f"ds_read_b64_tr_b16 {vr(w+4*ft,2)}, v{V_TR+2*ft} offset:{slot*2048}")
            a(f"ds_read_b64_tr_b16 {vr(w+4*ft+2,2)}, v{V_TR+2*ft+1} offset:{slot*2048}")
    a(f"s_waitcnt vmcnt({4*(D-2)})")
    trread(0)
    for n in range(NS):
        if n + D - 1 < NS:
            issue(n + D - 1)
        if n + 1 < NS:
            outstanding_after = min(NS - 1, n + D - 1) - (n + 1)
            a(f"s_waitcnt vmcnt({4*outstanding_after})")
            trread(n + 1)
            a("s_waitcnt lgkmcnt(4)")
        else:
            a("s_waitcnt lgkmcnt(0)")
        w = V_WF + 8 * (n % 2); b = V_BF + 8 * (n % D)
        ACC = V_DN if n < 28 else V_SS
        first = (n == 0 or n == 28)
        for th in range(2):
            for ft in range(2):
                A = vr(ACC + 16 * (2 * th + ft), 16)
                a(f"v_mfma_f32_32x32x16_bf16 {A}, {vr(w+4*ft,4)}, {vr(b+4*th,4)}, {'0' if first else A}")
    st()
    a("s_barrier")
    for o in range(4):
        a(f"s_cmp_eq_u32 s{S_W}, {o}")
        a(f"s_cbranch_scc1 K3_SKW{o}")
        a(f"s_lshl_b32 s{S_T0}, s{S_W}, 13")
        a(f"s_add_u32 s{S_T0}, s{S_T0}, {o*32768}")
        a(f"v_add_u32 v{V_X}, s{S_T0}, v{V_L16}")
        for which, ACC in enumerate((V_DN, V_SS)):
            for q in range(4):
                a(f"ds_write_b128 v{V_X}, {vr(ACC+16*o+4*q,4)} offset:{which*4096+q*1024}")
        a.label(f"K3_SKW{o}")
    a("s_waitcnt lgkmcnt(0)")
    a("s_barrier")
    for o in range(4):
        a(f"s_cmp_lg_u32 s{S_W}, {o}")
        a(f"s_cbranch_scc1 K3_SKM{o}")
        for r in range(16):
            a(f"v_mov_b32 v{V_BF+r}, v{V_DN+16*o+r}")
            a(f"v_mov_b32 v{V_BF+16+r}, v{V_SS+16*o+r}")
        a.label(f"K3_SKM{o}")
    a(f"s_lshl_b32 s{S_T0}, s{S_W}, 15")
    a(f"v_add_u32 v{V_X}, s{S_T0}, v{V_L16}")
    for s_ in range(4):
        a(f"s_cmp_eq_u32 s{S_W}, {s_}")
        a(f"s_cbranch_scc1 K3_SKR{s_}")
        for which in range(2):
            for q in range(4):
                a(f"ds_read_b128 {vr(V_DN+16*which+4*q,4)}, v{V_X} offset:{s_*8192+which*4096+q*1024}")
        a("s_waitcnt lgkmcnt(0)")
        for r in range(32):
            a(f"v_add_f32 v{V_BF+r}, v{V_BF+r}, v{V_DN+r}")
        a.label(f"K3_SKR{s_}")
    a(f"s_lshr_b32 s{S_T0}, s{S_W}, 1")
    a(f"s_and_b32 s{S_T1}, s{S_W}, 1")
    a(f"s_lshl_b32 s{S_T2}, s{S_TB}, 1")
    a(f"s_add_u32 s{S_T2}, s{S_T2}, s{S_T0}")
    a(f"s_mul_i32 s{S_T2}, s{S_T2}, {32*896}")
    a(f"s_lshl_b32 s{S_T3}, s{S_FB}, 7")
    a(f"s_add_u32 s{S_T2}, s{S_T2}, s{S_T3}")
    a(f"s_lshl_b32 s{S_T1}, s{S_T1}, 6")
    a(f"s_add_u32 s{S_T2}, s{S_T2}, s{S_T1}")
    a(f"v_and_b32 v{V_X}, 31, v{V_LANE}")
    a(f"s_movk_i32 s{S_T0}, 896")
    a(f"v_mul_u32_u24 v{V_X}, s{S_T0}, v{V_X}")
    a(f"v_lshrrev_b32 v{V_X+1}, 5, v{V_LANE}")
    a(f"v_lshl_add_u32 v{V_X}, v{V_X+1}, 5, v{V_X}")
    XV = V_WF
    a(f"buffer_load_dwordx4 {vr(XV,4)}, v{V_X}, s[{SRD_X}:{SRD_X+3}], s{S_T2} offen")
    a(f"buffer_load_dwordx4 {vr(XV+4,4)}, v{V_X}, s[{SRD_X}:{SRD_X+3}], s{S_T2} offen offset:16")
    DN, SS = V_BF, V_BF + 16
    TT = V_SS
    for r in range(16): a(f"v_mul_f32 v{TT+r}, 0xbfb8aa3b, v{DN+r}")
    for r in range(16): a(f"v_exp_f32 v{TT+r}, v{TT+r}")
    for r in range(16): a(f"v_add_f32 v{TT+r}, 1.0, v{TT+r}")
    for r in range(16): a(f"v_rcp_f32 v{TT+r}, v{TT+r}")
    for r in range(16): a(f"v_mul_f32 v{DN+r}, v{DN+r}, v{TT+r}")
    a("s_waitcnt vmcnt(0)")
    for r in range(8):
        a(f"v_lshlrev_b32 v{TT+2*r}, 16, v{XV+r}")
        a(f"v_and_b32 v{TT+2*r+1}, 0xffff0000, v{XV+r}")
    for r in range(16): a(f"v_fma_f32 v{TT+r}, v{SS+r}, v{DN+r}, v{TT+r}")
    for r in range(8): a(f"v_cvt_pk_bf16_f32 v{XV+r}, v{TT+2*r}, v{TT+2*r+1}")
    a(f"buffer_store_dwordx4 {vr(XV,4)}, v{V_X}, s[{SRD_OUT}:{SRD_OUT+3}], s{S_T2} offen")
    a(f"buffer_store_dwordx4 {vr(XV+4,4)}, v{V_X}, s[{SRD_OUT}:{SRD_OUT+3}], s{S_T2} offen offset:16")
    if STAMP:
        a("s_waitcnt vmcnt(0)")
        st()
        st.dump(37, S_W, 240, 241, "k3")
    a.label("K3_END")
    a("s_endpgm")

K1 = ("k1_kernel", gen2.gen_k1, 256, 512, 163840, 252, 102)
K2 = ("k2_kernel", gen_k2, 256, 256, 49152, 256, 64)
K3 = ("k3_kernel", gen_k3, 224, 256, 131072, 256, 64)
if __name__ == "__main__":
    build([K1, K2, K3], "all.s")
    STAMP = True
    build([K1, K2], "k2st.s")
    build([K1, K2, ], "k2st.s")
    gen2.STAMP = False
    build([K3], "k3st.s")
```

```python
import sys
from asmlib import Asm

NAME = "recurrent_scan__sliding_block__glu_gated_bilinear__prompt"
WS_QKV = 0
WS_H = 0x600000
WS_O = 0xD00000
WS_SIZE = 0x10000000

def vr(b, n): return "v[%d:%d]" % (b, b + n - 1)
def sr(b, n): return "s[%d:%d]" % (b, b + n - 1)

def srd(a, d, lo, size):
    a(f"s_mov_b32 s{d}, s{lo}")
    a(f"s_mov_b32 s{d+1}, s{lo+1}")
    a(f"s_mov_b32 s{d+2}, {size}")
    a(f"s_mov_b32 s{d+3}, 0x00020000")

STAMP = False
def gen_k1(a):
    nst = [0]
    def stamp():
        if not STAMP: return
        i = nst[0]; nst[0] += 1
        a(f"s_memtime s[{64+2*i}:{65+2*i}]")
    def dump_stamps():
        if not STAMP: return
        a("s_waitcnt lgkmcnt(0)")
        a("s_load_dwordx2 s[16:17], s[0:1], 64")
        a("s_waitcnt lgkmcnt(0)")
        a("s_mov_b32 s18, 65536")
        a("s_mov_b32 s19, 0x00020000")
        a("s_cmp_lg_u32 s2, 37")
        a("s_cbranch_scc1 K1_NOST%d" % nst[0] + lab[0])
        a("s_lshl_b32 s50, s3, 7")
        for i in range(nst[0]):
            a(f"v_mov_b32 v190, s{64+2*i}")
            a(f"v_mov_b32 v191, {4*i}")
            a(f"buffer_store_dword v190, v191, s[16:19], s50 offen")
        a("K1_NOST%d" % nst[0] + lab[0] + ":")
    lab = [""]
    SLOT = 28672
    XB = SLOT
    PF = 3
    V_LANE, V_L16, V_Q, V_G0, V_G1, V_A, V_B = 1, 2, 3, 4, 5, 6, 7
    V_TRQ0, V_TRQ1, V_TRG0, V_TRG1 = 8, 9, 10, 11
    V_AD = [[12, 13], [14, 15]]
    V_WF = 16
    V_ACA, V_ACB = 32, 48
    V_XN = 64
    V_T = 176
    V_PAD = 184
    V_X = 186
    S_W, S_TM, S_TN, S_T, S_G = 3, 33, 34, 35, 36
    S_5G = 37
    S_TOK = 38
    S_MHI = 40
    S_MT = 42
    S_MC = 44
    S_SO = 46
    S_ST16 = 47
    S_EXB = 48
    S_T0, S_T1, S_T2, S_T3 = 50, 51, 52, 53
    S_STO = 54
    S_W4 = 55
    SRD_X, SRD_WS, SRD_A, SRD_B = 4, 20, 24, 28

    a("s_cmp_ge_u32 s2, 256")
    a("s_cbranch_scc1 K1_END")
    stamp()
    a("s_load_dwordx2 s[16:17], s[0:1], 0")
    a("s_load_dwordx2 s[8:9], s[0:1], 8")
    a("s_load_dwordx4 s[12:15], s[0:1], 32")
    a("s_load_dwordx2 s[10:11], s[0:1], 72")
    a(f"v_and_b32 v{V_LANE}, 63, v0")
    a(f"v_lshrrev_b32 v{V_X}, 6, v0")
    a(f"v_lshlrev_b32 v{V_L16}, 4, v{V_LANE}")
    a(f"v_readfirstlane_b32 s{S_W}, v{V_X}")
    a(f"s_and_b32 s{S_T0}, s2, 7")
    a(f"s_lshr_b32 s{S_T1}, s2, 3")
    a(f"s_and_b32 s{S_T}, s{S_T0}, 1")
    a(f"s_lshl_b32 s{S_T}, s{S_T}, 3")
    a(f"s_and_b32 s{S_T2}, s{S_T1}, 7")
    a(f"s_add_u32 s{S_T}, s{S_T}, s{S_T2}")
    a(f"s_lshr_b32 s{S_G}, s{S_T0}, 1")
    a(f"s_lshl_b32 s{S_G}, s{S_G}, 2")
    a(f"s_lshr_b32 s{S_T2}, s{S_T1}, 3")
    a(f"s_add_u32 s{S_G}, s{S_G}, s{S_T2}")
    a(f"s_mul_i32 s{S_5G}, s{S_G}, 5")
    a(f"s_and_b32 s{S_TM}, s{S_W}, 3")
    a(f"s_lshr_b32 s{S_TN}, s{S_W}, 2")
    a(f"s_lshl_b32 s{S_TOK}, s{S_T}, 2")
    a(f"s_add_u32 s{S_TOK}, s{S_TOK}, s{S_TM}")
    a(f"s_lshl_b32 s{S_W4}, s{S_W}, 12")
    a(f"s_mov_b32 s{S_MHI}, 0")
    a(f"s_mov_b32 s{S_MHI+1}, -1")
    a("s_mov_b32 s56, 1204224")
    a("s_mov_b32 s57, 43008")
    R, C, MH, H, MG, X0, X1, X2 = [V_X + i for i in range(8)]
    a(f"v_bfe_u32 v{R}, v{V_LANE}, 2, 2")
    a(f"v_and_b32 v{C}, 3, v{V_LANE}")
    a(f"v_bfe_u32 v{MH}, v{V_LANE}, 4, 1")
    a(f"v_lshrrev_b32 v{H}, 5, v{V_LANE}")
    a(f"v_lshl_add_u32 v{MG}, v{MH}, 2, v{C}")
    a(f"v_and_b32 v{X0}, 1, v{MG}")
    a(f"v_lshlrev_b32 v{X0}, 2, v{X0}")
    a(f"v_lshrrev_b32 v{X1}, 1, v{MG}")
    a(f"v_or_b32 v{X0}, v{X0}, v{X1}")
    a(f"v_min_u32 v{X0}, 6, v{X0}")
    a(f"s_mul_i32 s{S_T0}, s{S_TN}, 56")
    a(f"v_lshlrev_b32 v{X0}, 3, v{X0}")
    a(f"v_add_u32 v{X0}, s{S_T0}, v{X0}")
    a(f"v_lshrrev_b32 v{X1}, 4, v{X0}")
    a(f"v_bfe_u32 v{X2}, v{R}, 1, 1")
    a(f"v_lshlrev_b32 v{X2}, 2, v{X2}")
    a(f"v_xor_b32 v{X1}, v{X1}, v{X2}")
    a(f"v_and_b32 v{X0}, 15, v{X0}")
    a(f"v_lshl_add_u32 v{X0}, v{X1}, 4, v{X0}")
    a(f"v_lshl_add_u32 v{X2}, v{H}, 3, v{R}")
    a(f"v_lshl_add_u32 v{V_TRQ0}, v{X2}, 7, v{X0}")
    a(f"v_add_u32 v{V_TRQ1}, 512, v{V_TRQ0}")
    a(f"s_lshl_b32 s{S_T0}, s{S_TN}, 1")
    a(f"v_and_b32 v{X0}, 1, v{C}")
    a(f"v_add_u32 v{X0}, s{S_T0}, v{X0}")
    a(f"v_lshlrev_b32 v{X1}, 1, v{MH}")
    a(f"v_xor_b32 v{X0}, v{X0}, v{X1}")
    a(f"v_lshlrev_b32 v{X0}, 4, v{X0}")
    a(f"v_lshrrev_b32 v{X1}, 1, v{C}")
    a(f"v_lshl_add_u32 v{X0}, v{X1}, 3, v{X0}")
    a(f"v_lshl_add_u32 v{X0}, v{X2}, 6, v{X0}")
    a(f"v_lshl_add_u32 v{V_TRG0}, v{MH}, 10, v{X0}")
    a(f"v_add_u32 v{V_TRG1}, 256, v{V_TRG0}")
    a(f"v_lshrrev_b32 v{X0}, 3, v{V_LANE}")
    a(f"v_and_b32 v{X1}, 7, v{V_LANE}")
    a(f"v_bfe_u32 v{X2}, v{V_LANE}, 4, 1")
    a(f"v_lshlrev_b32 v{X2}, 2, v{X2}")
    a(f"v_xor_b32 v{X1}, v{X1}, v{X2}")
    a(f"v_lshlrev_b32 v{X1}, 4, v{X1}")
    a(f"s_movk_i32 s{S_T0}, 2688")
    a(f"v_mad_u32_u24 v{V_Q}, v{X0}, s{S_T0}, v{X1}")
    a(f"v_lshrrev_b32 v{X0}, 2, v{V_LANE}")
    a(f"v_lshlrev_b32 v{X1}, 4, v{C}")
    a(f"s_movk_i32 s{S_T0}, 3584")
    a(f"v_mad_u32_u24 v{V_G0}, v{X0}, s{S_T0}, v{X1}")
    a(f"v_xor_b32 v{V_G1}, 32, v{V_G0}")
    V_XG, V_XW, V_XR = 16, 17, 18
    STG = 3 * SLOT
    a(f"v_lshrrev_b32 v{X0}, 2, v{V_LANE}")
    a(f"s_movk_i32 s{S_T0}, 896")
    a(f"v_lshlrev_b32 v{X1}, 4, v{C}")
    a(f"v_mad_u32_u24 v{V_XG}, v{X0}, s{S_T0}, v{X1}")
    a(f"s_lshl_b32 s{S_T1}, s{S_W}, 4")
    a(f"v_add_u32 v{X0}, s{S_T1}, v{X0}")
    a(f"s_movk_i32 s{S_T0}, 464")
    a(f"v_mad_u32_u24 v{V_XW}, v{X0}, s{S_T0}, v{X1}")
    a(f"v_add_u32 v{V_XW}, {STG}, v{V_XW}")
    a(f"v_and_b32 v{X0}, 31, v{V_LANE}")
    a(f"s_lshl_b32 s{S_T1}, s{S_TM}, 5")
    a(f"v_add_u32 v{X0}, s{S_T1}, v{X0}")
    a(f"v_lshlrev_b32 v{X1}, 4, v{H}")
    a(f"v_mad_u32_u24 v{V_XR}, v{X0}, s{S_T0}, v{X1}")
    a(f"v_add_u32 v{V_XR}, {STG}, v{V_XR}")
    a("s_waitcnt lgkmcnt(0)")
    stamp()
    srd(a, SRD_X, 16, 1835008)
    srd(a, SRD_WS, 10, WS_SIZE)
    a(f"s_mov_b32 s{SRD_A+3}, 0x00020000")
    a(f"s_mov_b32 s{SRD_B+3}, 0x00020000")

    vm = []

    def dma_setup(pd):
        a(f"s_add_u32 s{S_T0}, s{S_5G}, {pd}")
        a(f"s_mul_i32 s{S_T1}, s{S_T0}, 112")
        a(f"s_sub_u32 s{S_T2}, s{S_T0}, 24")
        a(f"s_lshl_b32 s{S_T2}, s{S_T2}, 6")
        a(f"s_cmp_ge_u32 s{S_T0}, 24")
        a(f"s_cselect_b64 s[{SRD_A}:{SRD_A+1}], s[12:13], s[8:9]")
        a(f"s_cselect_b64 s[{SRD_B}:{SRD_B+1}], s[14:15], s[8:9]")
        a(f"s_cselect_b32 s{SRD_A+2}, 1605632, s56")
        a(f"s_cselect_b32 s{SRD_B+2}, 1605632, s56")
        a(f"s_cselect_b32 s{S_ST16}, 57344, s57")
        a(f"s_cselect_b32 s{S_EXB}, 0, 21504")
        a(f"s_cselect_b32 s{S_T1}, s{S_T2}, s{S_T1}")
        a(f"s_cselect_b64 s[{S_MT}:{S_MT+1}], -1, 0")
        a(f"s_lshl_b32 s{S_T2}, s{S_W}, 1")
        a(f"s_mul_i32 s{S_SO}, s{S_T2}, s{S_ST16}")
        a(f"s_add_u32 s{S_SO}, s{S_SO}, s{S_T1}")
        a(f"v_cndmask_b32 v{V_A}, v{V_Q}, v{V_G0}, s[{S_MT}:{S_MT+1}]")
        a(f"v_cndmask_b32 v{V_B}, v{V_Q}, v{V_G1}, s[{S_MT}:{S_MT+1}]")

    def dma_group(gi):
        pd, half = gi >> 1, gi & 1
        if half == 0:
            dma_setup(pd)
        else:
            a(f"s_mul_i32 s{S_T0}, s{S_ST16}, 14")
            a(f"s_add_u32 s{S_SO}, s{S_SO}, s{S_T0}")
        slot = (gi % 5) * SLOT
        a(f"s_cmp_eq_u32 s{S_W}, 7")
        a(f"s_cbranch_scc1 K1_SKIPDMA{gi}")
        a(f"s_add_u32 s{S_T0}, s{S_SO}, s{S_EXB}")
        a(f"s_add_u32 s{S_T1}, s{S_SO}, s{S_ST16}")
        a(f"s_add_u32 s{S_T2}, s{S_T0}, s{S_ST16}")
        for i, (srdn, vo, so) in enumerate([(SRD_A, V_A, S_SO), (SRD_B, V_B, S_T0), (SRD_A, V_A, S_T1), (SRD_B, V_B, S_T2)]):
            a(f"s_add_u32 m0, s{S_W4}, {slot + i*1024}")
            a("s_nop 0")
            a(f"buffer_load_dwordx4 v{vo}, s[{srdn}:{srdn+3}], s{so} offen lds")
            vm.append(("G", gi))
        a.label(f"K1_SKIPDMA{gi}")

    XR = V_XN
    a(f"s_lshl_b32 s{S_T0}, s{S_W}, 4")
    a(f"s_lshl_b32 s{S_T1}, s{S_T}, 7")
    a(f"s_add_u32 s{S_T1}, s{S_T1}, s{S_T0}")
    a(f"s_mul_i32 s{S_T1}, s{S_T1}, 896")
    for i in range(14):
        a(f"buffer_load_dwordx4 {vr(XR+4*i,4)}, v{V_XG}, s[{SRD_X}:{SRD_X+3}], s{S_T1} offen offset:{64*i}")
    for gi in range(3):
        dma_group(gi)
    a(f"s_cmp_eq_u32 s{S_W}, 7")
    a("s_cbranch_scc1 K1_W7")
    a("s_waitcnt vmcnt(12)")
    a("s_branch K1_W7J")
    a.label("K1_W7")
    a("s_waitcnt vmcnt(0)")
    a.label("K1_W7J")
    stamp()
    SUM = [V_X + 0, V_X + 1]; SQ = [V_X + 2, V_X + 3]
    for r in SUM + SQ: a(f"v_mov_b32 v{r}, 0")
    a(f"s_mov_b32 s{S_T0}, 0x3f803f80")
    for i in range(56):
        a(f"v_dot2_f32_bf16 v{SUM[i&1]}, v{XR+i}, s{S_T0}, v{SUM[i&1]}")
        a(f"v_dot2_f32_bf16 v{SQ[i&1]}, v{XR+i}, v{XR+i}, v{SQ[i&1]}")
    a(f"v_add_f32 v{SUM[0]}, v{SUM[0]}, v{SUM[1]}")
    a(f"v_add_f32 v{SQ[0]}, v{SQ[0]}, v{SQ[1]}")
    for perm in ("[1,0,3,2]", "[2,3,0,1]"):
        a(f"v_add_f32_dpp v{SUM[0]}, v{SUM[0]}, v{SUM[0]} quad_perm:{perm} row_mask:0xf bank_mask:0xf")
        a(f"v_add_f32_dpp v{SQ[0]}, v{SQ[0]}, v{SQ[0]} quad_perm:{perm} row_mask:0xf bank_mask:0xf")
    M, VAR, RR, CC = V_X + 4, V_X + 5, V_X + 6, V_X + 7
    a(f"v_mul_f32 v{M}, 0x3b124925, v{SUM[0]}")
    a(f"v_mul_f32 v{VAR}, 0x3b124925, v{SQ[0]}")
    a(f"v_fma_f32 v{VAR}, -v{M}, v{M}, v{VAR}")
    a(f"v_max_f32 v{VAR}, 0, v{VAR}")
    def rbf(r):
        a(f"v_cvt_pk_bf16_f32 v{r}, v{r}, v{r}")
        a(f"v_lshlrev_b32 v{r}, 16, v{r}")
    rbf(M); rbf(VAR)
    a(f"v_add_f32 v{VAR}, 0x3727c5ac, v{VAR}")
    rbf(VAR)
    a(f"v_sqrt_f32 v{VAR}, v{VAR}")
    rbf(VAR)
    a(f"v_rcp_f32 v{RR}, v{VAR}")
    a(f"v_mul_f32 v{CC}, v{M}, v{RR}")
    a(f"v_sub_f32 v{CC}, 0, v{CC}")
    LO = [V_X + 8, V_X + 10]; HI = [V_X + 9, V_X + 11]
    XO = 120
    for i in range(56):
        lo, hi = LO[i & 1], HI[i & 1]
        a(f"v_lshlrev_b32 v{lo}, 16, v{XR+i}")
        a(f"v_and_b32 v{hi}, 0xffff0000, v{XR+i}")
        a(f"v_fma_f32 v{lo}, v{lo}, v{RR}, v{CC}")
        a(f"v_fma_f32 v{hi}, v{hi}, v{RR}, v{CC}")
        a(f"v_cvt_pk_bf16_f32 v{XO+i}, v{lo}, v{hi}")
    stamp()
    for i in range(7):
        a(f"ds_write_b128 v{V_XW}, {vr(XO+4*i,4)} offset:{64*i}")
    a("s_waitcnt lgkmcnt(0)")
    stamp()
    a("s_barrier")
    stamp()
    for s_ in range(14):
        a(f"ds_read_b128 {vr(V_XN+4*s_,4)}, v{V_XR} offset:{32*s_}")
    a("s_waitcnt lgkmcnt(0)")
    stamp()
    a("s_barrier")
    for i in range(7):
        a(f"ds_write_b128 v{V_XW}, {vr(XO+4*(7+i),4)} offset:{64*i}")
    a("s_waitcnt lgkmcnt(0)")
    a("s_barrier")
    for s_ in range(14):
        a(f"ds_read_b128 {vr(V_XN+4*(14+s_),4)}, v{V_XR} offset:{32*s_}")
    a("s_waitcnt lgkmcnt(0)")
    def addr_for_group(gi):
        p = gi >> 1
        ad = V_AD[gi & 1]
        slot = (gi % 5) * SLOT
        a(f"s_add_u32 s{S_T0}, s{S_5G}, {p}")
        a(f"s_cmp_ge_u32 s{S_T0}, 24")
        a(f"s_cselect_b64 s[{S_MC}:{S_MC+1}], -1, 0")
        a(f"v_cndmask_b32 v{ad[0]}, v{V_TRQ0}, v{V_TRG0}, s[{S_MC}:{S_MC+1}]")
        a(f"v_cndmask_b32 v{ad[1]}, v{V_TRQ1}, v{V_TRG1}, s[{S_MC}:{S_MC+1}]")
        if slot:
            a(f"v_add_u32 v{ad[0]}, {slot}, v{ad[0]}")
            a(f"v_add_u32 v{ad[1]}, {slot}, v{ad[1]}")

    def tr_reads(m):
        gi = m // 14; ad = V_AD[gi & 1]; b = V_WF + 4 * (m % 4); off = (m % 14) * 2048
        a(f"ds_read_b64_tr_b16 {vr(b,2)}, v{ad[0]} offset:{off}")
        a(f"ds_read_b64_tr_b16 {vr(b+2,2)}, v{ad[1]} offset:{off}")

    def wait_for(tag, extra_min=0):
        idx = max(i for i, t in enumerate(vm) if t == tag)
        n = len(vm) - 1 - idx
        a(f"s_waitcnt vmcnt({n})")

    def epi_setup(p, typ):
        o = []
        o.append(f"s_add_u32 s{S_T0}, s{S_5G}, {p}")
        if typ == "qkv":
            o.append(f"s_lshl_b32 s{S_T0}, s{S_T0}, 1")
            o.append(f"s_add_u32 s{S_T0}, s{S_T0}, s{S_TN}")
            o.append(f"s_cmp_ge_u32 s{S_T0}, 32")
            o.append(f"s_cselect_b32 s{S_T1}, 0x3f80, 0")
            o.append(f"v_mov_b32 v{V_PAD}, s{S_T1}")
            o.append(f"s_lshl_b32 s{S_T0}, s{S_T0}, 6")
            o.append(f"s_add_u32 s{S_T0}, s{S_T0}, s{S_TOK}")
            o.append(f"s_lshl_b32 s{S_STO}, s{S_T0}, 11")
        else:
            o.append(f"s_sub_u32 s{S_T0}, s{S_T0}, 24")
            o.append(f"s_lshl_b32 s{S_T0}, s{S_T0}, 1")
            o.append(f"s_add_u32 s{S_T0}, s{S_T0}, s{S_TN}")
            o.append(f"s_mul_i32 s{S_T1}, s{S_TOK}, 112")
            o.append(f"s_add_u32 s{S_T0}, s{S_T0}, s{S_T1}")
            o.append(f"s_lshl_b32 s{S_STO}, s{S_T0}, 10")
            o.append(f"s_add_u32 s{S_STO}, s{S_STO}, {WS_H}")
        return o

    def epi_body(typ):
        o = []
        if typ == "qkv":
            for e in range(8):
                o.append(f"v_cvt_pk_bf16_f32 v{V_T+e}, v{V_ACB+2*e}, v{V_ACB+2*e+1}")
            o.append(f"v_cndmask_b32 v{V_T+6}, v{V_T+6}, v{V_PAD}, s[{S_MHI}:{S_MHI+1}]")
            o.append(f"v_cndmask_b32 v{V_T+7}, v{V_T+7}, 0, s[{S_MHI}:{S_MHI+1}]")
            o.append(f"buffer_store_dwordx4 {vr(V_T,4)}, v{V_L16}, s[{SRD_WS}:{SRD_WS+3}], s{S_STO} offen")
            o.append(f"buffer_store_dwordx4 {vr(V_T+4,4)}, v{V_L16}, s[{SRD_WS}:{SRD_WS+3}], s{S_STO} offen offset:1024")
        else:
            for e in range(8):
                o.append(f"v_mul_f32 v{V_ACB+e}, v{V_ACB+e}, v{V_ACB+8+e}")
            for e in range(4):
                o.append(f"v_cvt_pk_bf16_f32 v{V_T+e}, v{V_ACB+2*e}, v{V_ACB+2*e+1}")
            o.append(f"buffer_store_dwordx4 {vr(V_T,4)}, v{V_L16}, s[{SRD_WS}:{SRD_WS+3}], s{S_STO} offen")
        return o

    def emit_step(n, extra):
        s = n % 28
        m = n + PF
        if m < 140: tr_reads(m)
        a(f"s_waitcnt lgkmcnt({2*min(PF, 139-n)})")
        C = "0" if s == 0 else vr(V_ACA, 16)
        D = vr(V_ACB, 16) if s == 27 else vr(V_ACA, 16)
        a(f"v_mfma_f32_32x32x16_bf16 {D}, {vr(V_WF+4*(n%4),4)}, {vr(V_XN+4*s,4)}, {C}")
        for x in extra: a(x)

    addr_for_group(0)
    wait_for(("G", 1))
    a("s_barrier")
    stamp()
    dma_group(3)
    dma_group(4)
    for m in range(PF): tr_reads(m)
    n = 0
    while n < 140:
        gi = n // 14
        if n % 14 == 0:
            if n > 0:
                if gi + 1 <= 9: wait_for(("G", gi + 1))
                a("s_barrier")
                a("s_waitcnt lgkmcnt(0)") if STAMP else None
                stamp()
                if gi + 4 <= 9: dma_group(gi + 4)
            if gi + 1 <= 9: addr_for_group(gi + 1)
        if n % 28 == 0 and n > 0:
            p = n // 28 - 1
            NE = 10
            a(f"s_add_u32 s{S_T0}, s{S_5G}, {p}")
            a(f"s_cmp_ge_u32 s{S_T0}, 24")
            a(f"s_cbranch_scc1 K1_GU{p}")
            vm_save = list(vm)
            for typ in ("qkv", "gu"):
                if typ == "gu": a.label(f"K1_GU{p}")
                ops = epi_setup(p, typ) + epi_body(typ)
                k = 0
                for j in range(NE):
                    ex = []
                    if j >= 3:
                        ex = ops[k:k + 4]; k += 4
                    if j == NE - 1:
                        ex += ops[k:]; k = len(ops)
                    emit_step(n + j, ex)
                if typ == "qkv": a(f"s_branch K1_JOIN{p}")
            a.label(f"K1_JOIN{p}")
            vm.append(("S", p))
            n += NE
            continue
        emit_step(n, [])
        n += 1
    stamp()
    p = 4
    a(f"s_add_u32 s{S_T0}, s{S_5G}, {p}")
    a(f"s_cmp_ge_u32 s{S_T0}, 24")
    a(f"s_cbranch_scc1 K1_GU{p}")
    for typ in ("qkv", "gu"):
        if typ == "gu": a.label(f"K1_GU{p}")
        for x in epi_setup(p, typ): a(x)
        a("s_nop 7")
        for x in epi_body(typ): a(x)
        if STAMP:
            a("s_waitcnt vmcnt(0)")
            lab[0] = typ
            save = nst[0]; stamp(); dump_stamps(); nst[0] = save
        a("s_endpgm")
    a.label("K1_END")
    a("s_endpgm")

def kernel_desc(name, vgpr, sgpr):
    acc = (vgpr + 3) // 4 * 4
    return f""".amdhsa_kernel {name}
  .amdhsa_next_free_vgpr {vgpr}
  .amdhsa_next_free_sgpr {sgpr}
  .amdhsa_accum_offset {acc}
  .amdhsa_group_segment_fixed_size 0
  .amdhsa_kernarg_size 80
  .amdhsa_user_sgpr_count 2
  .amdhsa_user_sgpr_kernarg_segment_ptr 1
  .amdhsa_system_sgpr_workgroup_id_x 1
.end_amdhsa_kernel
"""

HEADER = """; Kernarg layout for this problem (80 bytes, ptrs only, base s[0:1]):
;   offset   0: d_in[0] A_x  shape=(1, 2048, 448) dtype=bfloat16 strides=(1835008, 896, 2) contiguous=True
;   offset   8: d_in[1] A_wqkv  shape=(448, 1344) dtype=bfloat16 strides=(2688, 2) contiguous=True
;   offset  16: d_in[2] A_wo  shape=(448, 448) dtype=bfloat16 strides=(896, 2) contiguous=True
;   offset  24: d_in[3] B_x  shape=(1, 2048, 448) dtype=bfloat16 strides=(1835008, 896, 2) contiguous=True
;   offset  32: d_in[4] B_w_gate  shape=(448, 1792) dtype=bfloat16 strides=(3584, 2) contiguous=True
;   offset  40: d_in[5] B_w_up  shape=(448, 1792) dtype=bfloat16 strides=(3584, 2) contiguous=True
;   offset  48: d_in[6] B_w_down  shape=(1792, 448) dtype=bfloat16 strides=(896, 2) contiguous=True
"""

def build(kernels, path):
    txt = HEADER
    for (name, fn, grid, block, lds, vg, sg) in kernels:
        txt += f"; @launch kernel={name} grid=({grid},1,1) block=({block},1,1) lds={lds}\n"
    txt += '.amdgcn_target "amdgcn-amd-amdhsa--gfx950"\n.text\n'
    seen = set(); uk = []
    for kk in kernels:
        if kk[0] not in seen: seen.add(kk[0]); uk.append(kk)
    kernels = uk
    for (name, fn, grid, block, lds, vg, sg) in kernels:
        a = Asm(); fn(a)
        txt += f".globl {name}\n.p2align 8\n.type {name},@function\n{name}:\n"
        txt += "\n".join(("    " + l if not l.endswith(":") else l) for l in a.finalize()) + "\n"
    txt += '.section .rodata,"a"\n.p2align 6\n'
    for (name, fn, grid, block, lds, vg, sg) in kernels:
        txt += ".p2align 6\n" + kernel_desc(name, vg, sg)
    open(path, "w").write(txt)

if __name__ == "__main__":
    ks = [("k1_kernel", gen_k1, 256, 512, 163840, 200, 64)]
    build(ks, "k1.s")
    STAMP = True
    ks = [("k1_kernel", gen_k1, 256, 512, 163840, 200, 102)]
    build(ks, "k1st.s")
```

```python
import sys
from asmlib import Asm
from gen import vr, sr, srd, kernel_desc, HEADER, build, NAME, WS_QKV, WS_H, WS_O, WS_SIZE

class Stamper:
    def __init__(self, a, on, base=64, vtmp=(250, 251)):
        self.a, self.on, self.n, self.base = a, on, 0, base
        self.vreg = 252
    def __call__(self):
        if not self.on: return
        self.a(f"s_memtime s[100:101]")
        self.a("s_waitcnt lgkmcnt(0)")
        self.a(f"v_writelane_b32 v{self.vreg}, s100, {self.n}")
        self.n += 1
    def dump(self, wg, swave, v0, v1, tag):
        if not self.on: return
        a = self.a
        a("s_load_dwordx2 s[16:17], s[0:1], 64")
        a("s_waitcnt lgkmcnt(0)")
        a("s_mov_b32 s18, 65536")
        a("s_mov_b32 s19, 0x00020000")
        a(f"s_cmp_lg_u32 s2, {wg}")
        a(f"s_cbranch_scc1 NOST_{tag}")
        a(f"s_lshl_b32 s15, s{swave}, 7")
        a(f"v_and_b32 v{v1}, 63, v0")
        a(f"v_lshlrev_b32 v{v1}, 2, v{v1}")
        a(f"v_cmp_gt_u32 vcc, 128, v{v1}")
        a(f"s_and_saveexec_b64 s[98:99], vcc")
        a(f"buffer_store_dword v{self.vreg}, v{v1}, s[16:19], s15 offen")
        a(f"s_mov_b64 exec, s[98:99]")
        a(f"NOST_{tag}:")

STAMP = False
TOUCH = False
FUSED = False
PFW = True
ROT = True
LIM = True
RT = False
STF = ''

def gen_k1(a):
    st = Stamper(a, STAMP)
    PF = 3
    V_LANE, V_L16 = 1, 2
    V_VOFF = 3
    V_TR = 8
    V_WF = 20
    V_ACC = 36
    V_XN = 116
    V_T = 228
    V_PAD = 236
    V_X = 238
    S_W, S_TM, S_TN, S_T, S_G = 3, 33, 34, 35, 36
    S_5G, S_TOK, S_SUB, S_BLK = 37, 38, 39, 32
    S_MHI = 40
    S_M = 42
    S_SO = 44
    S_INC = 49
    S_T0, S_T1, S_T2, S_T3 = 54, 55, 56, 57
    S_M0 = 58
    S_STO = 59
    SRD_X, SRD_WS = 4, 20
    SRD_J = 60
    if STAMP: st.base = 80

    a("s_cmp_ge_u32 s2, 256")
    a("s_cbranch_scc1 K1_END")
    if RT: a("s_memrealtime s[98:99]")
    st()
    a("s_load_dwordx2 s[16:17], s[0:1], 0")
    a("s_load_dwordx2 s[8:9], s[0:1], 8")
    a("s_load_dwordx4 s[12:15], s[0:1], 32")
    a("s_load_dwordx2 s[10:11], s[0:1], 72")
    a("s_load_dwordx2 s[94:95], s[0:1], 48")
    a("s_load_dwordx2 s[96:97], s[0:1], 16")
    a("s_mov_b32 s93, 401408")
    a(f"v_and_b32 v{V_LANE}, 63, v0")
    a(f"v_lshrrev_b32 v{V_X}, 6, v0")
    a(f"v_lshlrev_b32 v{V_L16}, 4, v{V_LANE}")
    a(f"v_readfirstlane_b32 s{S_W}, v{V_X}")
    a(f"s_and_b32 s{S_T0}, s2, 7")
    a(f"s_lshr_b32 s{S_T1}, s2, 3")
    a(f"s_and_b32 s{S_T}, s{S_T0}, 1")
    a(f"s_lshl_b32 s{S_T}, s{S_T}, 3")
    a(f"s_and_b32 s{S_T2}, s{S_T1}, 7")
    a(f"s_add_u32 s{S_T}, s{S_T}, s{S_T2}")
    a(f"s_lshr_b32 s{S_G}, s{S_T0}, 1")
    a(f"s_lshl_b32 s{S_G}, s{S_G}, 2")
    a(f"s_lshr_b32 s{S_T2}, s{S_T1}, 3")
    a(f"s_add_u32 s{S_G}, s{S_G}, s{S_T2}")
    a(f"s_mul_i32 s{S_5G}, s{S_G}, 5")
    a(f"s_and_b32 s{S_TM}, s{S_W}, 3")
    a(f"s_lshr_b32 s{S_TN}, s{S_W}, 2")
    a(f"s_and_b32 s{S_SUB}, s{S_W}, 1")
    a(f"s_lshr_b32 s{S_BLK}, s{S_W}, 1")
    S_WR = 31 + 55
    a(f"s_and_b32 s{S_WR}, s{S_G}, {3 if ROT else 0}")
    a(f"s_lshl_b32 s{S_WR}, s{S_WR}, 1")
    a(f"s_add_u32 s{S_WR}, s{S_WR}, s{S_W}")
    a(f"s_and_b32 s{S_WR}, s{S_WR}, 7")
    a(f"s_lshl_b32 s{S_TOK}, s{S_T}, 2")
    a(f"s_add_u32 s{S_TOK}, s{S_TOK}, s{S_TM}")
    a(f"s_mov_b32 s{S_MHI}, 0")
    a(f"s_mov_b32 s{S_MHI+1}, -1")
    R, C, MH, H, MG, X0, X1, X2, TQ, TG, VQ, VG = [V_X + i for i in range(12)]
    a(f"v_bfe_u32 v{R}, v{V_LANE}, 2, 2")
    a(f"v_and_b32 v{C}, 3, v{V_LANE}")
    a(f"v_bfe_u32 v{MH}, v{V_LANE}, 4, 1")
    a(f"v_lshrrev_b32 v{H}, 5, v{V_LANE}")
    a(f"v_lshl_add_u32 v{MG}, v{MH}, 2, v{C}")
    a(f"v_and_b32 v{X0}, 1, v{MG}")
    a(f"v_lshlrev_b32 v{X0}, 2, v{X0}")
    a(f"v_lshrrev_b32 v{X1}, 1, v{MG}")
    a(f"v_or_b32 v{X0}, v{X0}, v{X1}")
    a(f"v_min_u32 v{X0}, 6, v{X0}")
    a(f"s_mul_i32 s{S_T0}, s{S_TN}, 56")
    a(f"v_lshlrev_b32 v{X0}, 3, v{X0}")
    a(f"v_add_u32 v{X0}, s{S_T0}, v{X0}")
    a(f"v_lshrrev_b32 v{X1}, 4, v{X0}")
    a(f"v_bfe_u32 v{X2}, v{R}, 1, 1")
    a(f"v_lshlrev_b32 v{X2}, 2, v{X2}")
    a(f"v_xor_b32 v{X1}, v{X1}, v{X2}")
    a(f"v_and_b32 v{X0}, 15, v{X0}")
    a(f"v_lshl_add_u32 v{X0}, v{X1}, 4, v{X0}")
    a(f"v_lshl_add_u32 v{X2}, v{H}, 3, v{R}")
    a(f"v_lshl_add_u32 v{TQ}, v{X2}, 7, v{X0}")
    a(f"s_lshl_b32 s{S_T0}, s{S_TN}, 1")
    a(f"v_and_b32 v{X0}, 1, v{C}")
    a(f"v_add_u32 v{X0}, s{S_T0}, v{X0}")
    a(f"v_lshlrev_b32 v{X1}, 1, v{MH}")
    a(f"v_xor_b32 v{X0}, v{X0}, v{X1}")
    a(f"v_lshlrev_b32 v{X0}, 4, v{X0}")
    a(f"v_lshrrev_b32 v{X1}, 1, v{C}")
    a(f"v_lshl_add_u32 v{X0}, v{X1}, 3, v{X0}")
    a(f"v_lshl_add_u32 v{X0}, v{X2}, 6, v{X0}")
    a(f"v_lshl_add_u32 v{TG}, v{MH}, 10, v{X0}")
    a(f"v_lshrrev_b32 v{X0}, 3, v{V_LANE}")
    a(f"v_and_b32 v{X1}, 7, v{V_LANE}")
    a(f"v_bfe_u32 v{X2}, v{V_LANE}, 4, 1")
    a(f"v_lshlrev_b32 v{X2}, 2, v{X2}")
    a(f"v_xor_b32 v{X1}, v{X1}, v{X2}")
    a(f"v_lshlrev_b32 v{X1}, 4, v{X1}")
    a(f"s_movk_i32 s{S_T0}, 2688")
    a(f"v_mad_u32_u24 v{VQ}, v{X0}, s{S_T0}, v{X1}")
    a(f"v_lshrrev_b32 v{X0}, 2, v{V_LANE}")
    a(f"v_lshlrev_b32 v{X1}, 4, v{C}")
    a(f"s_movk_i32 s{S_T0}, 3584")
    a(f"v_mad_u32_u24 v{VG}, v{X0}, s{S_T0}, v{X1}")
    a(f"s_lshl_b32 s{S_T0}, s{S_SUB}, 5")
    a(f"v_xor_b32 v{VG}, s{S_T0}, v{VG}")
    V_XG, V_XW, V_XR = 20, 21, 22
    a(f"v_lshrrev_b32 v{X0}, 2, v{V_LANE}")
    a(f"s_movk_i32 s{S_T0}, 896")
    a(f"v_lshlrev_b32 v{X1}, 4, v{C}")
    a(f"v_mad_u32_u24 v{V_XG}, v{X0}, s{S_T0}, v{X1}")
    a(f"s_and_b32 s{S_T1}, s{S_WR}, 1")
    a(f"s_lshl_b32 s{S_T1}, s{S_T1}, 4")
    a(f"v_add_u32 v{X0}, s{S_T1}, v{X0}")
    a(f"s_movk_i32 s{S_T0}, 464")
    a(f"v_mad_u32_u24 v{V_XW}, v{X0}, s{S_T0}, v{X1}")
    a(f"s_lshr_b32 s{S_T1}, s{S_WR}, 1")
    a(f"s_lshl_b32 s{S_T1}, s{S_T1}, 15")
    a(f"s_add_u32 s{S_T1}, s{S_T1}, 16384")
    a(f"v_add_u32 v{V_XW}, s{S_T1}, v{V_XW}")
    a(f"v_and_b32 v{X0}, 31, v{V_LANE}")
    a(f"v_lshlrev_b32 v{X1}, 4, v{H}")
    a(f"v_mad_u32_u24 v{V_XR}, v{X0}, s{S_T0}, v{X1}")
    a(f"s_lshl_b32 s{S_T1}, s{S_TM}, 15")
    a(f"s_add_u32 s{S_T1}, s{S_T1}, 16384")
    a(f"v_add_u32 v{V_XR}, s{S_T1}, v{V_XR}")
    a(f"s_lshl_b32 s{S_M0}, s{S_W}, 10")
    a("s_waitcnt lgkmcnt(0)")
    st()
    srd(a, SRD_X, 16, 1835008)
    srd(a, SRD_WS, 10, WS_SIZE)
    a("s_cmp_lg_u32 s2, 0")
    a("s_cbranch_scc1 K1_NOZ")
    a(f"s_cmp_lg_u32 s{S_W}, 0")
    a("s_cbranch_scc1 K1_NOZ")
    a(f"v_lshlrev_b32 v{X0}, 7, v{V_LANE}")
    a(f"v_mov_b32 v{X1}, 0")
    a(f"s_mov_b32 s{S_T0}, 0xF00000")
    a(f"buffer_store_dword v{X1}, v{X0}, s[{SRD_WS}:{SRD_WS+3}], s{S_T0} offen sc0 sc1")
    if FUSED:
        a(f"s_mov_b32 s{S_T0}, 0xF02000")
        a(f"buffer_store_dword v{X1}, v{X0}, s[{SRD_WS}:{SRD_WS+3}], s{S_T0} offen sc0 sc1")
        a("s_load_dwordx2 s[88:89], s[0:1], 64")
        a("s_waitcnt vmcnt(0) lgkmcnt(0)")
        a("s_mov_b32 s90, 256")
        a("s_mov_b32 s91, 0x00020000")
        a(f"v_mov_b32 v{X0}, 0")
        a(f"v_mov_b32 v{X1}, 1")
        a("s_mov_b64 exec, 1")
        a(f"buffer_store_dword v{X1}, v{X0}, s[88:91], 0 offen sc0 sc1")
        a("s_mov_b64 exec, -1")
    a.label("K1_NOZ")
    if TOUCH:
        SRD_TMP = 84
        a(f"s_cmp_ge_u32 s{S_W}, 5")
        a("s_cbranch_scc1 K1_TX")
        a(f"v_min_u32 v{X0}, 55, v{V_LANE}")
        a(f"s_and_b32 s{S_T0}, s{S_T}, 7")
        a(f"s_mul_i32 s{S_T0}, s{S_T0}, 56")
        a(f"v_add_u32 v{X0}, s{S_T0}, v{X0}")
        a(f"s_add_u32 s{S_T1}, s{S_5G}, s{S_W}")
        a(f"s_cmp_lt_u32 s{S_T1}, 56")
        a("s_cbranch_scc0 K1_TQ")
        a(f"s_movk_i32 s{S_T2}, 3584")
        a(f"v_mul_u32_u24 v{X0}, s{S_T2}, v{X0}")
        a(f"s_lshl_b32 s{S_T1}, s{S_T1}, 6")
        srd(a, SRD_TMP, 12, 1605632)
        a(f"buffer_load_dword v{X1}, v{X0}, s[{SRD_TMP}:{SRD_TMP+3}], s{S_T1} offen")
        a(f"s_mov_b32 s{SRD_TMP}, s14")
        a(f"s_mov_b32 s{SRD_TMP+1}, s15")
        a(f"buffer_load_dword v{X2}, v{X0}, s[{SRD_TMP}:{SRD_TMP+3}], s{S_T1} offen")
        a("s_branch K1_TX")
        a.label("K1_TQ")
        a(f"s_movk_i32 s{S_T2}, 2688")
        a(f"v_mul_u32_u24 v{X0}, s{S_T2}, v{X0}")
        a(f"s_sub_u32 s{S_T1}, s{S_T1}, 56")
        a(f"s_mul_i32 s{S_T1}, s{S_T1}, 112")
        srd(a, SRD_TMP, 8, 1204224)
        a(f"buffer_load_dword v{X1}, v{X0}, s[{SRD_TMP}:{SRD_TMP+3}], s{S_T1} offen")
        a(f"buffer_load_dword v{X2}, v{X0}, s[{SRD_TMP}:{SRD_TMP+3}], s{S_T1} offen offset:108")
        a.label("K1_TX")
    XR = V_XN
    a(f"s_lshl_b32 s{S_T0}, s{S_WR}, 4")
    a(f"s_lshl_b32 s{S_T1}, s{S_T}, 7")
    a(f"s_add_u32 s{S_T1}, s{S_T1}, s{S_T0}")
    a(f"s_mul_i32 s{S_T1}, s{S_T1}, 896")
    for i in range(14):
        a(f"buffer_load_dwordx4 {vr(XR+4*i,4)}, v{V_XG}, s[{SRD_X}:{SRD_X+3}], s{S_T1} offen offset:{64*i}")
    a(f"s_cmp_eq_u32 s{S_SUB}, 1")
    a("s_cselect_b64 s[18:19], s[14:15], s[12:13]")
    a(f"s_mul_i32 s{S_T2}, s{S_BLK}, 57344")
    a(f"s_mul_i32 s{S_T3}, s{S_BLK}, 43008")
    a(f"s_mul_i32 s{S_T0}, s{S_SUB}, 21504")
    a(f"s_add_u32 s{S_T3}, s{S_T3}, s{S_T0}")
    a("s_mov_b32 s30, 1204224")
    a("s_mov_b32 s31, 172032")
    a("s_mov_b32 s29, 512")
    for j in range(5):
        sj = SRD_J + 4 * j
        a(f"s_add_u32 s{S_T0}, s{S_5G}, {j}")
        a(f"s_lshl_b32 s{S_T1}, s{S_T0}, 6")
        a(f"s_add_u32 s{S_T1}, s{S_T1}, s{S_T2}")
        a(f"s_sub_u32 s{S_STO}, s{S_T0}, 56")
        a(f"s_mul_i32 s{S_STO}, s{S_STO}, 112")
        a(f"s_add_u32 s{S_STO}, s{S_STO}, s{S_T3}")
        a(f"s_cmp_lt_u32 s{S_T0}, 56")
        a(f"s_cselect_b64 s[{sj}:{sj+1}], s[18:19], s[8:9]")
        a(f"s_cselect_b32 s{sj+2}, 1605632, s30")
        a(f"s_mov_b32 s{sj+3}, 0x00020000")
        a(f"s_cselect_b32 s{S_SO+j}, s{S_T1}, s{S_STO}")
        a(f"s_cselect_b32 s{S_INC+j}, 229376, s31")
        a(f"s_cselect_b64 s[{S_M}:{S_M+1}], -1, 0")
        a(f"v_cndmask_b32 v{V_VOFF+j}, v{VQ}, v{VG}, s[{S_M}:{S_M+1}]")
        a(f"v_cndmask_b32 v{V_TR+2*j}, v{TQ}, v{TG}, s[{S_M}:{S_M+1}]")
        a(f"s_cselect_b32 s{S_T1}, 256, s29")
        a(f"v_add_u32 v{V_TR+2*j}, {j*32768}, v{V_TR+2*j}")
        a(f"v_add_u32 v{V_TR+2*j+1}, s{S_T1}, v{V_TR+2*j}")
    SRD_PF, S_PF = 88, 92
    a("s_lshr_b32 s92, s2, 3")
    a("s_lshl_b32 s92, s92, 3")
    a(f"s_add_u32 s92, s92, s{S_W}")
    a("s_cmp_lt_u32 s92, 196")
    a("s_cselect_b64 s[88:89], s[94:95], s[96:97]")
    a("s_cselect_b32 s90, 1605632, s93")
    a("s_mov_b32 s91, 0x00020000")
    a("s_cselect_b32 s93, 0, 196")
    a("s_sub_u32 s92, s92, s93")
    a("s_lshl_b32 s92, s92, 13")
    a("s_barrier")

    def dma_group(g):
        slot = g % 4
        for j in range(5):
            sj = SRD_J + 4 * j
            a(f"s_add_u32 m0, s{S_M0}, {j*32768 + slot*8192}")
            a("s_nop 0")
            a(f"buffer_load_dwordx4 v{V_VOFF+j}, s[{sj}:{sj+3}], s{S_SO+j} offen lds")
            a(f"s_add_u32 s{S_SO+j}, s{S_SO+j}, s{S_INC+j}")
    dma_group(0); dma_group(1)
    a("s_waitcnt vmcnt(23)")
    st()
    SUM = [V_X + 0, V_X + 1]; SQ = [V_X + 2, V_X + 3]
    for r in SUM + SQ: a(f"v_mov_b32 v{r}, 0")
    a(f"s_mov_b32 s{S_T0}, 0x3f803f80")
    for i in range(56):
        a(f"v_dot2_f32_bf16 v{SUM[i&1]}, v{XR+i}, s{S_T0}, v{SUM[i&1]}")
        a(f"v_dot2_f32_bf16 v{SQ[i&1]}, v{XR+i}, v{XR+i}, v{SQ[i&1]}")
        if i % 4 == 3 and i < 55: a(f"s_waitcnt vmcnt({10 + 12 - i//4})")
    a(f"v_add_f32 v{SUM[0]}, v{SUM[0]}, v{SUM[1]}")
    a(f"v_add_f32 v{SQ[0]}, v{SQ[0]}, v{SQ[1]}")
    for perm in ("[1,0,3,2]", "[2,3,0,1]"):
        a(f"v_add_f32_dpp v{SUM[0]}, v{SUM[0]}, v{SUM[0]} quad_perm:{perm} row_mask:0xf bank_mask:0xf")
        a(f"v_add_f32_dpp v{SQ[0]}, v{SQ[0]}, v{SQ[0]} quad_perm:{perm} row_mask:0xf bank_mask:0xf")
    M, VAR, RR, CC = V_X + 4, V_X + 5, V_X + 6, V_X + 7
    a(f"v_mul_f32 v{M}, 0x3b124925, v{SUM[0]}")
    a(f"v_mul_f32 v{VAR}, 0x3b124925, v{SQ[0]}")
    a(f"v_fma_f32 v{VAR}, -v{M}, v{M}, v{VAR}")
    a(f"v_max_f32 v{VAR}, 0, v{VAR}")
    def rbf(r):
        a(f"v_cvt_pk_bf16_f32 v{r}, v{r}, v{r}")
        a(f"v_lshlrev_b32 v{r}, 16, v{r}")
    rbf(M); rbf(VAR)
    a(f"v_add_f32 v{VAR}, 0x3727c5ac, v{VAR}")
    rbf(VAR)
    a(f"v_sqrt_f32 v{VAR}, v{VAR}")
    rbf(VAR)
    a(f"v_rcp_f32 v{RR}, v{VAR}")
    a(f"v_mul_f32 v{CC}, v{M}, v{RR}")
    a(f"v_sub_f32 v{CC}, 0, v{CC}")
    XO = V_XN + 56
    TU = V_ACC
    for i0 in range(0, 56, 8):
        for i in range(8): a(f"v_lshlrev_b32 v{TU+2*i}, 16, v{XR+i0+i}")
        for i in range(8): a(f"v_and_b32 v{TU+2*i+1}, 0xffff0000, v{XR+i0+i}")
        for i in range(16): a(f"v_fma_f32 v{TU+i}, v{TU+i}, v{RR}, v{CC}")
        for i in range(8): a(f"v_cvt_pk_bf16_f32 v{XO+i0+i}, v{TU+2*i}, v{TU+2*i+1}")
        if i0 == 24:
            for ii in range(7):
                a(f"ds_write_b128 v{V_XW}, {vr(XO+4*ii,4)} offset:{64*ii}")
    st()
    a("s_waitcnt lgkmcnt(0)")
    a("s_barrier")
    for s_ in range(14):
        a(f"ds_read_b128 {vr(V_XN+4*s_,4)}, v{V_XR} offset:{32*s_}")
    a("s_waitcnt lgkmcnt(0)")
    a("s_barrier")
    for i in range(7):
        a(f"ds_write_b128 v{V_XW}, {vr(XO+4*(7+i),4)} offset:{64*i}")
    a("s_waitcnt lgkmcnt(0)")
    a("s_barrier")
    for s_ in range(14):
        a(f"ds_read_b128 {vr(V_XN+4*(14+s_),4)}, v{V_XR} offset:{32*s_}")
    a("s_waitcnt lgkmcnt(0) vmcnt(0)")
    st()
    a("s_barrier")
    st()
    dma_group(2); dma_group(3)

    def tr_reads(m):
        s, j = m // 5, m % 5
        g, b = s // 4, s % 4
        off = (g % 4) * 8192 + b * 2048
        w = V_WF + 4 * (m % 4)
        a(f"ds_read_b64_tr_b16 {vr(w,2)}, v{V_TR+2*j} offset:{off}")
        a(f"ds_read_b64_tr_b16 {vr(w+2,2)}, v{V_TR+2*j+1} offset:{off}")

    vm = [("G", 2)] * 5 + [("G", 3)] * 5
    npf = [0]
    def prefetch(k):
        for _ in range(k):
            i = npf[0]
            if i >= 8: return
            npf[0] += 1
            a(f"s_add_u32 s{S_T0}, s{S_PF}, {i*1024}")
            a(f"buffer_load_dwordx4 {vr(V_T + 4*(i&1),4)}, v{V_L16}, s[{SRD_PF}:{SRD_PF+3}], s{S_T0} offen")
            vm.append(("P", i))
    issued = [0]
    limit = [39]
    def fill(n):
        while issued[0] <= min(n + PF, limit[0], 139):
            tr_reads(issued[0]); issued[0] += 1
    fill(0 - 1 + 0)
    for n in range(140):
        s, j = n // 5, n % 5
        g = s // 4
        if n % 20 == 0 and n > 0:
            want = g + 1 if (g + 1 <= 6 and (g >= 2 or not LIM)) else g
            if ("G", want) in vm:
                idx = max(i for i, t in enumerate(vm) if t == ("G", want))
                a(f"s_waitcnt vmcnt({len(vm)-1-idx})")
            a("s_barrier")
            st()
            limit[0] = max(limit[0], 20 * want + 19)
            if g + 3 <= 6:
                dma_group(g + 3); vm += [("G", g + 3)] * 5
            if PFW: prefetch(2)
        fill(n)
        a(f"s_waitcnt lgkmcnt({2*(issued[0]-1-n)})")
        acc = vr(V_ACC + 16 * j, 16)
        a(f"v_mfma_f32_32x32x16_bf16 {acc}, {vr(V_WF+4*(n%4),4)}, {vr(V_XN+4*s,4)}, {'0' if s == 0 else acc}")
    if PFW: a("s_waitcnt vmcnt(0)")
    st()
    for j in range(5):
        A = V_ACC + 16 * j
        T = V_T if j % 2 == 0 else V_WF
        a(f"s_add_u32 s{S_T0}, s{S_5G}, {j}")
        a(f"s_cmp_lt_u32 s{S_T0}, 56")
        a(f"s_cbranch_scc1 K1_EGU{j}")
        a(f"s_sub_u32 s{S_T0}, s{S_T0}, 56")
        a(f"s_lshl_b32 s{S_T0}, s{S_T0}, 1")
        a(f"s_add_u32 s{S_T0}, s{S_T0}, s{S_TN}")
        a(f"s_cmp_ge_u32 s{S_T0}, 32")
        a(f"s_cselect_b32 s{S_T1}, 0x3f80, 0")
        a(f"v_mov_b32 v{V_PAD}, s{S_T1}")
        a(f"s_lshl_b32 s{S_T0}, s{S_T0}, 6")
        a(f"s_add_u32 s{S_T0}, s{S_T0}, s{S_TOK}")
        a(f"s_lshl_b32 s{S_STO}, s{S_T0}, 11")
        a("s_nop 4")
        for e in range(8):
            a(f"v_cvt_pk_bf16_f32 v{T+e}, v{A+2*e}, v{A+2*e+1}")
        a(f"v_cndmask_b32 v{T+6}, v{T+6}, v{V_PAD}, s[{S_MHI}:{S_MHI+1}]")
        a(f"v_cndmask_b32 v{T+7}, v{T+7}, 0, s[{S_MHI}:{S_MHI+1}]")
        a(f"buffer_store_dwordx4 {vr(T,4)}, v{V_L16}, s[{SRD_WS}:{SRD_WS+3}], s{S_STO} offen{STF}")
        a(f"buffer_store_dwordx4 {vr(T+4,4)}, v{V_L16}, s[{SRD_WS}:{SRD_WS+3}], s{S_STO} offen offset:1024{STF}")
        a(f"s_branch K1_EJ{j}")
        a.label(f"K1_EGU{j}")
        a(f"s_lshl_b32 s{S_T0}, s{S_T0}, 1")
        a(f"s_add_u32 s{S_T0}, s{S_T0}, s{S_TN}")
        a(f"s_mul_i32 s{S_T1}, s{S_TOK}, 112")
        a(f"s_add_u32 s{S_T0}, s{S_T0}, s{S_T1}")
        a(f"s_lshl_b32 s{S_STO}, s{S_T0}, 10")
        a(f"s_add_u32 s{S_STO}, s{S_STO}, {WS_H}")
        a("s_nop 6")
        for e in range(8):
            a(f"v_mul_f32 v{A+e}, v{A+e}, v{A+8+e}")
        for e in range(4):
            a(f"v_cvt_pk_bf16_f32 v{T+e}, v{A+2*e}, v{A+2*e+1}")
        a(f"buffer_store_dwordx4 {vr(T,4)}, v{V_L16}, s[{SRD_WS}:{SRD_WS+3}], s{S_STO} offen{STF}")
        a.label(f"K1_EJ{j}")
    if RT:
        a("s_waitcnt vmcnt(0)")
        a("s_memrealtime s[100:101]")
        a("s_waitcnt lgkmcnt(0)")
        a(f"s_cmp_lg_u32 s{S_W}, 0")
        a("s_cbranch_scc1 K1_END")
        a("v_mov_b32 v240, s98")
        a("v_mov_b32 v241, s100")
        a("s_lshl_b32 s15, s2, 3")
        a("s_add_u32 s15, s15, 0x4000000")
        a("v_mov_b32 v242, 0")
        a(f"buffer_store_dwordx2 v[240:241], v242, s[{SRD_WS}:{SRD_WS+3}], s15 offen")
    if STAMP:
        a("s_waitcnt vmcnt(0)")
        st()
        st.dump(37, S_W, 240, 241, "k1")
    if FUSED:
        a("s_waitcnt vmcnt(0)")
        a("s_barrier")
        a(f"s_cmp_lg_u32 s{S_W}, 0")
        a("s_cbranch_scc1 K1_PUBD")
        a("s_load_dwordx2 s[88:89], s[0:1], 64")
        a("s_waitcnt lgkmcnt(0)")
        a("s_mov_b32 s90, 256")
        a("s_mov_b32 s91, 0x00020000")
        a("v_mov_b32 v241, 0")
        a.label("K1_INITP")
        a("buffer_load_dword v240, v241, s[88:91], 0 offen sc0 sc1")
        a("s_waitcnt vmcnt(0)")
        a("v_readfirstlane_b32 s92, v240")
        a("s_cmp_lg_u32 s92, 0")
        a("s_cbranch_scc1 K1_INITOK")
        a("s_sleep 8")
        a("s_branch K1_INITP")
        a.label("K1_INITOK")
        a(f"s_lshl_b32 s92, s{S_T}, 7")
        a("s_add_u32 s92, s92, 0xF02000")
        a("v_mov_b32 v240, 1")
        a("s_mov_b64 exec, 1")
        a(f"s_cmp_gt_u32 s{S_G}, 11")
        a("s_cbranch_scc1 K1_NOH")
        a(f"buffer_atomic_add v240, v241, s[{SRD_WS}:{SRD_WS+3}], s92 offen sc1")
        a.label("K1_NOH")
        a(f"s_cmp_lt_u32 s{S_G}, 11")
        a("s_cbranch_scc1 K1_NOQ")
        a("s_add_u32 s92, s92, 2048")
        a(f"buffer_atomic_add v240, v241, s[{SRD_WS}:{SRD_WS+3}], s92 offen sc1")
        a.label("K1_NOQ")
        a("s_mov_b64 exec, -1")
        a.label("K1_PUBD")
        return
    a.label("K1_END")
    a("s_endpgm")

if __name__ == "__main__":
    build([("k1_kernel", gen_k1, 256, 512, 163840, 252, 102)], "k1.s")
    STAMP = True
    build([("k1_kernel", gen_k1, 256, 512, 163840, 256, 102)], "k1st.s")
```

```python
from asmlib import Asm
from gen import vr, sr, srd, kernel_desc, HEADER, build, NAME, WS_QKV, WS_H, WS_O, WS_SIZE
import gen2
FUSED = False
from gen2 import Stamper
import struct

STAMP = False
LDS_A = 0
LDS_G = 65536
LDS_SYNC = 131072
WS_CNT = 0xF00000
HB = 12
WL = 6

def SC(): return ' sc0 sc1' if FUSED else ''

def tile_common(a, V_X, V_LANE, V_TR, V_WV, S_T0, lds_base_sreg):
    R, C, MH, H, MG, X0, X1, X2 = [V_X + i for i in range(8)]
    a(f"v_bfe_u32 v{R}, v{V_LANE}, 2, 2")
    a(f"v_and_b32 v{C}, 3, v{V_LANE}")
    a(f"v_bfe_u32 v{MH}, v{V_LANE}, 4, 1")
    a(f"v_lshrrev_b32 v{H}, 5, v{V_LANE}")
    a(f"v_lshl_add_u32 v{MG}, v{MH}, 2, v{C}")
    a(f"v_and_b32 v{X0}, 1, v{MG}")
    a(f"v_lshlrev_b32 v{X0}, 2, v{X0}")
    a(f"v_lshrrev_b32 v{X1}, 1, v{MG}")
    a(f"v_or_b32 v{X0}, v{X0}, v{X1}")
    a(f"v_lshlrev_b32 v{X0}, 3, v{X0}")
    a(f"v_bfe_u32 v{X2}, v{R}, 1, 1")
    a(f"v_lshlrev_b32 v{X2}, 6, v{X2}")
    a(f"v_xor_b32 v{X0}, v{X0}, v{X2}")
    a(f"v_lshl_add_u32 v{X1}, v{H}, 3, v{R}")
    a(f"v_lshl_add_u32 v{X0}, v{X1}, 7, v{X0}")
    a(f"v_add_u32 v{V_TR}, s{lds_base_sreg}, v{X0}")
    a(f"v_add_u32 v{V_TR+1}, 512, v{V_TR}")
    a(f"v_xor_b32 v{V_TR+2}, 64, v{V_TR}")
    a(f"v_xor_b32 v{V_TR+3}, 64, v{V_TR+1}")
    a(f"v_lshrrev_b32 v{X0}, 3, v{V_LANE}")
    a(f"v_and_b32 v{X1}, 7, v{V_LANE}")
    a(f"v_bfe_u32 v{X2}, v{V_LANE}, 4, 1")
    a(f"v_lshlrev_b32 v{X2}, 2, v{X2}")
    a(f"v_xor_b32 v{X1}, v{X1}, v{X2}")
    a(f"v_lshlrev_b32 v{X1}, 4, v{X1}")
    a(f"s_movk_i32 s{S_T0}, 896")
    a(f"v_mad_u32_u24 v{V_WV}, v{X0}, s{S_T0}, v{X1}")

def attention(a, st):
    V_LANE, V_L16, V_VV, V_TRV, V_T = 1, 2, 3, 4, 5
    V_X = 6
    V_Q = 16; V_KF = 24; V_VF = 40; V_O = 56; V_P = 72; V_S = 96
    S_W, S_HD, S_T4, S_QB = 3, 33, 34, 35
    S_T0, S_T1, S_T2, S_T3 = 36, 37, 38, 39
    S_MHI = 40
    S_TB, S_FB = 52, 53
    SRD_WS = 4
    a(f"s_and_b32 s{S_HD}, s2, 15")
    a(f"s_lshr_b32 s{S_T4}, s2, 4")
    a(f"s_lshl_b32 s{S_QB}, s{S_T4}, 2")
    a(f"s_add_u32 s{S_QB}, s{S_QB}, s{S_W}")
    a(f"s_mov_b32 s{S_MHI}, 0")
    a(f"s_mov_b32 s{S_MHI+1}, -1")
    R, C, MH, H, X0, X1 = [V_X + i for i in range(6)]
    a(f"v_bfe_u32 v{R}, v{V_LANE}, 2, 2")
    a(f"v_and_b32 v{C}, 3, v{V_LANE}")
    a(f"v_bfe_u32 v{MH}, v{V_LANE}, 4, 1")
    a(f"v_lshrrev_b32 v{H}, 5, v{V_LANE}")
    a(f"v_and_b32 v{X0}, 1, v{C}")
    a(f"v_lshlrev_b32 v{X0}, 10, v{X0}")
    a(f"v_lshrrev_b32 v{X1}, 1, v{C}")
    a(f"v_lshl_add_u32 v{X0}, v{X1}, 9, v{X0}")
    a(f"v_lshrrev_b32 v{X1}, 2, v{V_LANE}")
    a(f"v_lshl_add_u32 v{V_VV}, v{X1}, 4, v{X0}")
    a(f"v_and_b32 v{X0}, 1, v{C}")
    a(f"v_lshlrev_b32 v{X0}, 1, v{X0}")
    a(f"v_lshl_add_u32 v{X0}, v{MH}, 2, v{X0}")
    a(f"v_lshrrev_b32 v{X1}, 1, v{C}")
    a(f"v_add_u32 v{X0}, v{X0}, v{X1}")
    a(f"v_lshlrev_b32 v{X0}, 3, v{X0}")
    a(f"v_lshl_add_u32 v{X1}, v{H}, 2, v{R}")
    a(f"v_lshl_add_u32 v{X0}, v{X1}, 6, v{X0}")
    a(f"s_lshl_b32 s{S_T0}, s{S_W}, 12")
    a(f"s_add_u32 s{S_T1}, s{S_T0}, {2048 + LDS_A}")
    a(f"v_add_u32 v{V_TRV}, s{S_T1}, v{X0}")
    V_KA = 12
    a(f"s_add_u32 s{S_T0}, s{S_T0}, {LDS_A}")
    a(f"v_add_u32 v{V_KA}, s{S_T0}, v{V_L16}")
    a(f"v_and_b32 v{X0}, 31, v{V_LANE}")
    a(f"v_lshlrev_b32 v{X1}, 2, v{H}")
    a(f"v_sub_u32 v{V_T}, v{X0}, v{X1}")
    a("s_waitcnt lgkmcnt(0)")
    srd(a, SRD_WS, 10, WS_SIZE)
    if FUSED and not gen2.KVPF:
        a(f"v_mov_b32 v{V_X}, {LDS_SYNC}")
        a(f"s_cmp_lg_u32 s{S_W}, 0")
        a("s_cbranch_scc1 K23_QW")
        a(f"v_min_u32 v{V_X+1}, 2, v{V_LANE}")
        a(f"v_sub_u32 v{V_X+1}, s{S_T4}, v{V_X+1}")
        a(f"v_max_i32 v{V_X+1}, 0, v{V_X+1}")
        a(f"v_lshlrev_b32 v{V_X+1}, 7, v{V_X+1}")
        a(f"s_mov_b32 s{S_T0}, 0xF02800")
        a.label("K23_QP")
        a(f"buffer_load_dword v{V_X+2}, v{V_X+1}, s[{SRD_WS}:{SRD_WS+3}], s{S_T0} offen sc0 sc1")
        a("s_waitcnt vmcnt(0)")
        a(f"v_cmp_gt_u32 vcc, 16, v{V_X+2}")
        a("s_nop 1")
        a("s_cmp_eq_u64 vcc, 0")
        a("s_cbranch_scc1 K23_QOK")
        a("s_sleep 4")
        a("s_branch K23_QP")
        a.label("K23_QOK")
        a(f"v_mov_b32 v{V_X+1}, 1")
        a(f"ds_write_b32 v{V_X}, v{V_X+1} offset:8")
        a("s_branch K23_QGO")
        a.label("K23_QW")
        a(f"ds_read_b32 v{V_X+1}, v{V_X} offset:8")
        a("s_waitcnt lgkmcnt(0)")
        a(f"v_readfirstlane_b32 s{S_T0}, v{V_X+1}")
        a(f"s_cmp_lg_u32 s{S_T0}, 0")
        a("s_cbranch_scc1 K23_QGO")
        a("s_sleep 2")
        a("s_branch K23_QW")
        a.label("K23_QGO")
    a(f"s_lshl_b32 s{S_T0}, s{S_HD}, 6")
    a(f"s_add_u32 s{S_T0}, s{S_T0}, s{S_QB}")
    a(f"s_lshl_b32 s{S_T0}, s{S_T0}, 11")
    a(f"buffer_load_dwordx4 {vr(V_Q,4)}, v{V_L16}, s[{SRD_WS}:{SRD_WS+3}], s{S_T0} offen{SC()}")
    a(f"buffer_load_dwordx4 {vr(V_Q+4,4)}, v{V_L16}, s[{SRD_WS}:{SRD_WS+3}], s{S_T0} offen offset:1024{SC()}")
    for u in range(0 if (FUSED and gen2.KVPF) else 3):
        a(f"s_lshl_b32 s{S_T0}, s{S_T4}, 2")
        a(f"s_add_u32 s{S_T0}, s{S_T0}, s{S_W}")
        a(f"s_add_i32 s{S_T0}, s{S_T0}, {4*u - 8}")
        a(f"s_max_i32 s{S_T0}, s{S_T0}, 0")
        a(f"s_lshl_b32 s{S_T1}, s{S_HD}, 6")
        a(f"s_add_u32 s{S_T0}, s{S_T0}, s{S_T1}")
        a(f"s_lshl_b32 s{S_T0}, s{S_T0}, 11")
        a(f"s_add_u32 s{S_T1}, s{S_T0}, {16*64*2048}")
        a(f"s_add_u32 s{S_T2}, s{S_T0}, {32*64*2048}")
        a(f"s_lshl_b32 s{S_T3}, s{S_W}, 12")
        a(f"s_add_u32 s{S_T3}, s{S_T3}, {u*16384 + LDS_A}")
        a(f"s_mov_b32 m0, s{S_T3}")
        a("s_nop 0")
        a(f"buffer_load_dwordx4 v{V_L16}, s[{SRD_WS}:{SRD_WS+3}], s{S_T1} offen{SC()} lds")
        a(f"buffer_load_dwordx4 v{V_L16}, s[{SRD_WS}:{SRD_WS+3}], s{S_T1} offen offset:1024{SC()} lds")
        a(f"s_add_u32 m0, s{S_T3}, 2048")
        a("s_nop 0")
        a(f"buffer_load_dwordx4 v{V_VV}, s[{SRD_WS}:{SRD_WS+3}], s{S_T2} offen{SC()} lds")
        a(f"s_add_u32 m0, s{S_T3}, 3072")
        a(f"s_add_u32 s{S_T2}, s{S_T2}, 256")
        a(f"buffer_load_dwordx4 v{V_VV}, s[{SRD_WS}:{SRD_WS+3}], s{S_T2} offen{SC()} lds")
    def lds_sync(off, tag):
        a(f"v_mov_b32 v{V_X}, {LDS_SYNC}")
        a(f"v_mov_b32 v{V_X+1}, 1")
        a("s_mov_b64 exec, 1")
        a(f"ds_add_u32 v{V_X}, v{V_X+1} offset:{off}")
        a("s_mov_b64 exec, -1")
        a.label(f"K23_SP{tag}")
        a(f"ds_read_b32 v{V_X+1}, v{V_X} offset:{off}")
        a("s_waitcnt lgkmcnt(0)")
        a(f"v_readfirstlane_b32 s{S_T0}, v{V_X+1}")
        a(f"s_cmp_ge_u32 s{S_T0}, 4")
        a(f"s_cbranch_scc1 K23_SG{tag}")
        a("s_sleep 1")
        a(f"s_branch K23_SP{tag}")
        a.label(f"K23_SG{tag}")
    a("s_waitcnt vmcnt(0)")
    lds_sync(0, "a")
    st()
    NEG = "0xf149f2ca"
    def kread(j):
        b = V_KF + 8 * (j & 1)
        a(f"ds_read_b128 {vr(b,4)}, v{V_KA} offset:{j*4096}")
        a(f"ds_read_b128 {vr(b+4,4)}, v{V_KA} offset:{j*4096+1024}")
    kread(0)
    for j in range(9):
        if j + 1 < 9:
            kread(j + 1); a("s_waitcnt lgkmcnt(2)")
        else:
            a("s_waitcnt lgkmcnt(0)")
        b = V_KF + 8 * (j & 1); S = vr(V_S + 16 * j, 16)
        a(f"v_mfma_f32_32x32x16_bf16 {S}, {vr(b,4)}, {vr(V_Q,4)}, 0")
        a(f"v_mfma_f32_32x32x16_bf16 {S}, {vr(b+4,4)}, {vr(V_Q+4,4)}, {S}")
    a(f"s_cmp_ge_u32 s{S_QB}, 8")
    a("s_cbranch_scc1 K2_NOINV")
    a("s_nop 15")
    for j in range(8):
        a(f"s_add_u32 s{S_T0}, s{S_QB}, {j}")
        a(f"s_cmp_ge_u32 s{S_T0}, 8")
        a(f"s_cbranch_scc1 K2_NOINV2")
        for r in range(16): a(f"v_mov_b32 v{V_S+16*j+r}, {NEG}")
    a.label("K2_NOINV2")
    a.label("K2_NOINV")
    a(f"v_mov_b32 v{V_X}, {NEG}")
    for r in range(16):
        cc = 8 * (r >> 2) + (r & 3)
        sp = 44 + 2 * (r % 4)
        a(f"v_cmp_lt_i32 s[{sp}:{sp+1}], v{V_T}, {cc}")
        if r >= 2:
            rr = r - 2; sq = 44 + 2 * (rr % 4)
            a(f"v_cndmask_b32 v{V_S+rr}, v{V_X}, v{V_S+rr}, s[{sq}:{sq+1}]")
            a(f"v_cndmask_b32 v{V_S+128+rr}, v{V_S+128+rr}, v{V_X}, s[{sq}:{sq+1}]")
    for rr in (14, 15):
        sq = 44 + 2 * (rr % 4)
        a(f"v_cndmask_b32 v{V_S+rr}, v{V_X}, v{V_S+rr}, s[{sq}:{sq+1}]")
        a(f"v_cndmask_b32 v{V_S+128+rr}, v{V_S+128+rr}, v{V_X}, s[{sq}:{sq+1}]")
    MX = [V_X + 1, V_X + 2, V_X + 3, V_X + 4]
    for i in range(4):
        a(f"v_max_f32 v{MX[i]}, v{V_S+i}, v{V_S+4+i}")
    for i in range(8, 144, 8):
        for q in range(4):
            a(f"v_max3_f32 v{MX[q]}, v{MX[q]}, v{V_S+i+q}, v{V_S+i+4+q}")
    a(f"v_max3_f32 v{MX[0]}, v{MX[0]}, v{MX[1]}, v{MX[2]}")
    a(f"v_max_f32 v{MX[0]}, v{MX[0]}, v{MX[3]}")
    a(f"v_mov_b32 v{MX[1]}, v{MX[0]}")
    a(f"v_permlane32_swap_b32 v{MX[0]}, v{MX[1]}")
    a(f"v_max_f32 v{MX[0]}, v{MX[0]}, v{MX[1]}")
    CS = 0.18898223650461362 * 1.4426950408889634
    cbits = struct.unpack("<I", struct.pack("<f", CS))[0]
    a(f"s_mov_b32 s{S_T0}, {cbits:#x}")
    NM = V_X + 5
    a(f"v_mul_f32 v{NM}, s{S_T0}, v{MX[0]}")
    a(f"v_sub_f32 v{NM}, 0, v{NM}")
    st()
    def vread(j, sp):
        b = V_VF + 4 * ((2 * j + sp) % 4)
        off = j * 4096 + sp * 1024
        a(f"ds_read_b64_tr_b16 {vr(b,2)}, v{V_TRV} offset:{off}")
        a(f"ds_read_b64_tr_b16 {vr(b+2,2)}, v{V_TRV} offset:{off+512}")
    vread(0, 0); vread(0, 1)
    for j in range(9):
        for sp in range(2):
            n = 2 * j + sp
            S = V_S + 16 * j + 8 * sp
            P = V_P + 4 * (n % 4)
            for r in range(8): a(f"v_fma_f32 v{S+r}, v{S+r}, s{S_T0}, v{NM}")
            for r in range(8): a(f"v_exp_f32 v{S+r}, v{S+r}")
            for r in range(4): a(f"v_cvt_pk_bf16_f32 v{P+r}, v{S+2*r}, v{S+2*r+1}")
            m = n + 2
            if m < 18:
                vread(m // 2, m % 2); a("s_waitcnt lgkmcnt(4)")
            elif m == 18: a("s_waitcnt lgkmcnt(2)")
            else: a("s_waitcnt lgkmcnt(0)")
            b = V_VF + 4 * (n % 4)
            a(f"v_mfma_f32_32x32x16_bf16 {vr(V_O,16)}, {vr(b,4)}, {vr(P,4)}, {'0' if n == 0 else vr(V_O,16)}")
    st()
    L0, L1, RI, RP = V_X, V_X + 1, V_X + 2, V_X + 3
    a("s_nop 7")
    a(f"v_mov_b32 v{L0}, v{V_O+12}")
    a(f"v_mov_b32 v{L1}, v{V_O+12}")
    a(f"v_permlane32_swap_b32 v{L0}, v{L1}")
    a(f"v_rcp_f32 v{RI}, v{L1}")
    a(f"v_cndmask_b32 v{RP}, v{RI}, 0, s[{S_MHI}:{S_MHI+1}]")
    for r in range(16):
        a(f"v_mul_f32 v{V_O+r}, v{V_O+r}, v{RI if r < 12 else RP}")
    for r in range(8):
        a(f"v_cvt_pk_bf16_f32 v{V_P+r}, v{V_O+2*r}, v{V_O+2*r+1}")
    a(f"s_lshl_b32 s{S_T0}, s{S_QB}, 4")
    a(f"s_add_u32 s{S_T0}, s{S_T0}, s{S_HD}")
    a(f"s_lshl_b32 s{S_T0}, s{S_T0}, 11")
    a(f"s_add_u32 s{S_T0}, s{S_T0}, {WS_O}")
    a(f"buffer_store_dwordx4 {vr(V_P,4)}, v{V_L16}, s[{SRD_WS}:{SRD_WS+3}], s{S_T0} offen sc0 sc1")
    a(f"buffer_store_dwordx4 {vr(V_P+4,4)}, v{V_L16}, s[{SRD_WS}:{SRD_WS+3}], s{S_T0} offen offset:1024 sc0 sc1")
    a("s_waitcnt vmcnt(0)")
    lds_sync(4, "b")
    a(f"s_cmp_lg_u32 s{S_W}, 0")
    a("s_cbranch_scc1 K23_NOSIG")
    a(f"s_lshr_b32 s{S_T0}, s{S_HD}, 2")
    a(f"s_lshl_b32 s{S_T1}, s{S_T4}, 2")
    a(f"s_add_u32 s{S_T0}, s{S_T0}, s{S_T1}")
    a(f"v_mov_b32 v{V_X}, 1")
    a(f"v_mov_b32 v{V_X+1}, 0")
    a(f"s_lshl_b32 s{S_T0}, s{S_T0}, 7")
    a(f"s_add_u32 s{S_T0}, s{S_T0}, {WS_CNT}")
    a("s_mov_b64 exec, 1")
    a(f"buffer_atomic_add v{V_X}, v{V_X+1}, s[{SRD_WS}:{SRD_WS+3}], s{S_T0} offen sc1")
    a("s_mov_b64 exec, -1")
    a.label("K23_NOSIG")
    st()
    a(f"s_cmp_ge_u32 s{S_FB}, 7")
    a("s_cbranch_scc1 K23_END0")
    V_TR, V_WV = 16, 20
    V_WF = 24; V_ACC = 96; V_BF = 160
    S_L0, S_WO, S_BO = 41, 42, 43
    SRD_WOO = 20
    a(f"s_lshl_b32 s{S_L0}, s{S_W}, 14")
    a(f"s_add_u32 s{S_L0}, s{S_L0}, {LDS_A}")
    tile_common(a, V_X, V_LANE, V_TR, V_WV, S_T0, S_L0)
    srd(a, SRD_WOO, 16, 401408)
    a(f"s_mul_i32 s{S_WO}, s{S_W}, {112*896}")
    a(f"s_lshl_b32 s{S_T0}, s{S_FB}, 7")
    a(f"s_add_u32 s{S_WO}, s{S_WO}, s{S_T0}")
    for u in range(8):
        a(f"s_add_u32 m0, s{S_L0}, {u*2048}")
        a(f"s_add_u32 s{S_T0}, s{S_WO}, {8*896}")
        a(f"buffer_load_dwordx4 v{V_WV}, s[{SRD_WOO}:{SRD_WOO+3}], s{S_WO} offen lds")
        a(f"s_add_u32 m0, s{S_L0}, {u*2048+1024}")
        a("s_nop 0")
        a(f"buffer_load_dwordx4 v{V_WV}, s[{SRD_WOO}:{SRD_WOO+3}], s{S_T0} offen lds")
        a(f"s_add_u32 s{S_WO}, s{S_WO}, {16*896 if u % 2 == 0 else 12*896}")
    a(f"s_lshr_b32 s{S_T0}, s{S_TB}, 1")
    a(f"s_lshl_b32 s{S_T0}, s{S_T0}, 2")
    a(f"s_add_u32 s{S_T0}, s{S_T0}, s{S_W}")
    a(f"s_lshl_b32 s{S_T0}, s{S_T0}, 7")
    a(f"s_add_u32 s{S_T0}, s{S_T0}, {WS_CNT}")
    a(f"v_mov_b32 v{V_X+1}, 0")
    a.label("K23_POLL")
    a(f"buffer_load_dword v{V_X}, v{V_X+1}, s[{SRD_WS}:{SRD_WS+3}], s{S_T0} offen sc0 sc1")
    a("s_waitcnt vmcnt(0)")
    a(f"v_readfirstlane_b32 s{S_T1}, v{V_X}")
    a(f"s_cmp_ge_u32 s{S_T1}, 4")
    a("s_cbranch_scc1 K23_READY")
    a("s_sleep 8")
    a("s_branch K23_POLL")
    a.label("K23_READY")
    st()
    a(f"s_lshl_b32 s{S_BO}, s{S_TB}, 16")
    a(f"s_lshl_b32 s{S_T0}, s{S_W}, 13")
    a(f"s_add_u32 s{S_BO}, s{S_BO}, s{S_T0}")
    a(f"s_add_u32 s{S_BO}, s{S_BO}, {WS_O}")
    for u in range(8):
        b = V_BF + 8 * u
        a(f"buffer_load_dwordx4 {vr(b,4)}, v{V_L16}, s[{SRD_WS}:{SRD_WS+3}], s{S_BO} offen sc0 sc1")
        a(f"s_add_u32 s{S_T0}, s{S_BO}, 32768")
        a(f"buffer_load_dwordx4 {vr(b+4,4)}, v{V_L16}, s[{SRD_WS}:{SRD_WS+3}], s{S_T0} offen sc0 sc1")
        a(f"s_add_u32 s{S_BO}, s{S_BO}, 1024")
    def trread(u):
        w = V_WF + 8 * (u % 2)
        for ft in range(2):
            a(f"ds_read_b64_tr_b16 {vr(w+4*ft,2)}, v{V_TR+2*ft} offset:{u*2048}")
            a(f"ds_read_b64_tr_b16 {vr(w+4*ft+2,2)}, v{V_TR+2*ft+1} offset:{u*2048}")
    trread(0)
    for u in range(8):
        if u + 1 < 8:
            trread(u + 1); a("s_waitcnt lgkmcnt(4)")
        else: a("s_waitcnt lgkmcnt(0)")
        a(f"s_waitcnt vmcnt({2*(7-u)})")
        w = V_WF + 8 * (u % 2); b = V_BF + 8 * u
        for th in range(2):
            for ft in range(2):
                A = vr(V_ACC + 16 * (2 * th + ft), 16)
                a(f"v_mfma_f32_32x32x16_bf16 {A}, {vr(w+4*ft,4)}, {vr(b+4*th,4)}, {'0' if u == 0 else A}")
    a(f"v_add_u32 v{V_X}, s{S_L0}, v{V_L16}")
    for t in range(4):
        for q in range(4):
            a(f"ds_write_b128 v{V_X}, {vr(V_ACC+16*t+4*q,4)} offset:{t*4096+q*1024}")
    st()

def gemm(a, st):
    V_LANE, V_L16, V_WV, V_TR = 1, 2, 3, 4
    V_X = 8; V_WF = 16; V_BF = 32; V_DN = 128
    S_W, S_TB, S_FB = 3, 52, 53
    S_T0, S_T1, S_T2, S_T3 = 36, 37, 38, 39
    S_WO, S_BO, S_L0 = 40, 41, 42
    SRD_WS, SRD_WD = 4, 8
    a(f"s_lshl_b32 s{S_L0}, s{S_W}, 14")
    a(f"s_add_u32 s{S_L0}, s{S_L0}, {LDS_G}")
    tile_common(a, V_X, V_LANE, V_TR, V_WV, S_T0, S_L0)
    a("s_waitcnt lgkmcnt(0)")
    a(f"s_cmp_ge_u32 s{S_FB}, 7")
    a("s_cbranch_scc1 K23_END0")
    srd(a, SRD_WS, 10, WS_SIZE)
    srd(a, SRD_WD, 14, 1605632)
    a(f"s_mul_i32 s{S_WO}, s{S_W}, {28*16*896}")
    a(f"s_lshl_b32 s{S_T0}, s{S_FB}, 7")
    a(f"s_add_u32 s{S_WO}, s{S_WO}, s{S_T0}")
    a(f"s_lshl_b32 s{S_T1}, s{S_TB}, 1")
    a(f"s_mul_i32 s{S_BO}, s{S_T1}, 112")
    a(f"s_mul_i32 s{S_T2}, s{S_W}, 28")
    a(f"s_add_u32 s{S_BO}, s{S_BO}, s{S_T2}")
    a(f"s_lshl_b32 s{S_BO}, s{S_BO}, 10")
    a(f"s_add_u32 s{S_BO}, s{S_BO}, {WS_H}")
    NS = 28
    ops = []
    def issue_w(n):
        slot = n % WL
        a(f"s_add_u32 m0, s{S_L0}, {slot*2048}")
        a(f"s_add_u32 s{S_T0}, s{S_WO}, {8*896}")
        a(f"buffer_load_dwordx4 v{V_WV}, s[{SRD_WD}:{SRD_WD+3}], s{S_WO} offen lds")
        a(f"s_add_u32 m0, s{S_L0}, {slot*2048+1024}")
        a("s_nop 0")
        a(f"buffer_load_dwordx4 v{V_WV}, s[{SRD_WD}:{SRD_WD+3}], s{S_T0} offen lds")
        a(f"s_add_u32 s{S_WO}, s{S_WO}, {16*896}")
        ops.extend([("w", n)] * 2)
    def issue_b(n):
        b = V_BF + 8 * (n % HB)
        a(f"buffer_load_dwordx4 {vr(b,4)}, v{V_L16}, s[{SRD_WS}:{SRD_WS+3}], s{S_BO} offen{SC()}")
        a(f"s_add_u32 s{S_T0}, s{S_BO}, {112*1024}")
        a(f"buffer_load_dwordx4 {vr(b+4,4)}, v{V_L16}, s[{SRD_WS}:{SRD_WS+3}], s{S_T0} offen{SC()}")
        a(f"s_add_u32 s{S_BO}, s{S_BO}, 1024")
        ops.extend([("b", n)] * 2)
    def wait_for(tags):
        idx = max(i for i, t in enumerate(ops) if t in tags)
        a(f"s_waitcnt vmcnt({len(ops)-1-idx})")
    def trread(n):
        slot = n % WL; w = V_WF + 8 * (n % 2)
        for ft in range(2):
            a(f"ds_read_b64_tr_b16 {vr(w+4*ft,2)}, v{V_TR+2*ft} offset:{slot*2048}")
            a(f"ds_read_b64_tr_b16 {vr(w+4*ft+2,2)}, v{V_TR+2*ft+1} offset:{slot*2048}")
    if FUSED:
        for n in range(WL - 1): issue_w(n)
        a(f"v_mov_b32 v{V_X}, {LDS_SYNC}")
        a(f"s_cmp_lg_u32 s{S_W}, 0")
        a("s_cbranch_scc1 K23_HW")
        a(f"s_lshr_b32 s{S_T0}, s{S_TB}, 1")
        a(f"s_lshl_b32 s{S_T0}, s{S_T0}, 7")
        a(f"s_add_u32 s{S_T0}, s{S_T0}, 0xF02000")
        a(f"v_mov_b32 v{V_X+1}, 0")
        a.label("K23_HP")
        a(f"buffer_load_dword v{V_X+2}, v{V_X+1}, s[{SRD_WS}:{SRD_WS+3}], s{S_T0} offen sc0 sc1")
        a("s_waitcnt vmcnt(0)")
        a(f"v_readfirstlane_b32 s{S_T1}, v{V_X+2}")
        a(f"s_cmp_ge_u32 s{S_T1}, 16")
        a("s_cbranch_scc1 K23_HOK")
        a("s_sleep 4")
        a("s_branch K23_HP")
        a.label("K23_HOK")
        a(f"v_mov_b32 v{V_X+1}, 1")
        a(f"ds_write_b32 v{V_X}, v{V_X+1} offset:12")
        a("s_branch K23_HGO")
        a.label("K23_HW")
        a(f"ds_read_b32 v{V_X+1}, v{V_X} offset:12")
        a("s_waitcnt lgkmcnt(0)")
        a(f"v_readfirstlane_b32 s{S_T0}, v{V_X+1}")
        a(f"s_cmp_lg_u32 s{S_T0}, 0")
        a("s_cbranch_scc1 K23_HGO")
        a("s_sleep 2")
        a("s_branch K23_HW")
        a.label("K23_HGO")
        for n in range(HB - 1): issue_b(n)
    else:
        for n in range(HB - 1):
            if n < WL - 1: issue_w(n)
            issue_b(n)
    st()
    wait_for([("w", 0)])
    trread(0)
    for n in range(NS):
        if n + HB - 1 < NS: issue_b(n + HB - 1)
        if n + WL - 1 < NS: issue_w(n + WL - 1)
        if n + 1 < NS:
            wait_for([("w", n + 1), ("b", n)])
            trread(n + 1)
            a("s_waitcnt lgkmcnt(4)")
        else:
            wait_for([("b", n)])
            a("s_waitcnt lgkmcnt(0)")
        w = V_WF + 8 * (n % 2); b = V_BF + 8 * (n % HB)
        for th in range(2):
            for ft in range(2):
                A = vr(V_DN + 16 * (2 * th + ft), 16)
                a(f"v_mfma_f32_32x32x16_bf16 {A}, {vr(w+4*ft,4)}, {vr(b+4*th,4)}, {'0' if n == 0 else A}")
    st()
    a(f"v_add_u32 v{V_X}, s{S_L0}, v{V_L16}")
    for t in range(4):
        for q in range(4):
            a(f"ds_write_b128 v{V_X}, {vr(V_DN+16*t+4*q,4)} offset:{t*4096+q*1024}")
    st()

def final(a, st):
    V_LANE, V_L16 = 1, 2
    V_X = 8; DN = 32; SS = 40; RD = 48; XV = 120; TT = 128; V_XO = 16
    S_U, S_TB, S_FB = 97, 52, 53
    S_T0, S_T1, S_T2, S_T3 = 36, 37, 38, 39
    SRD_X, SRD_OUT = 24, 28
    srd(a, SRD_X, 18, 1835008)
    srd(a, SRD_OUT, 56, 1835008)
    a(f"s_and_b32 s{S_T0}, s{S_U}, 3")
    a(f"s_lshr_b32 s{S_T1}, s{S_T0}, 1")
    a(f"s_lshl_b32 s{S_T2}, s{S_TB}, 1")
    a(f"s_add_u32 s{S_T2}, s{S_T2}, s{S_T1}")
    a(f"s_mul_i32 s{S_T2}, s{S_T2}, {32*896}")
    a(f"s_lshl_b32 s{S_T3}, s{S_FB}, 7")
    a(f"s_add_u32 s{S_T2}, s{S_T2}, s{S_T3}")
    a(f"s_and_b32 s{S_T1}, s{S_U}, 1")
    a(f"s_lshl_b32 s{S_T1}, s{S_T1}, 6")
    a(f"s_add_u32 s{S_T2}, s{S_T2}, s{S_T1}")
    a(f"s_lshr_b32 s{S_T1}, s{S_U}, 2")
    a(f"s_lshl_b32 s{S_T3}, s{S_T1}, 4")
    a(f"s_add_u32 s{S_T2}, s{S_T2}, s{S_T3}")
    a(f"v_and_b32 v{V_X}, 31, v{V_LANE}")
    a(f"s_movk_i32 s{S_T3}, 896")
    a(f"v_mul_u32_u24 v{V_X}, s{S_T3}, v{V_X}")
    a(f"v_lshrrev_b32 v{V_X+1}, 5, v{V_LANE}")
    a(f"v_lshl_add_u32 v{V_XO}, v{V_X+1}, 5, v{V_X}")
    a(f"buffer_load_dwordx4 {vr(XV,4)}, v{V_XO}, s[{SRD_X}:{SRD_X+3}], s{S_T2} offen")
    a(f"s_lshl_b32 s{S_T0}, s{S_T0}, 12")
    a(f"s_lshl_b32 s{S_T1}, s{S_T1}, 11")
    a(f"s_add_u32 s{S_T0}, s{S_T0}, s{S_T1}")
    a(f"v_add_u32 v{V_X}, s{S_T0}, v{V_L16}")
    a("s_waitcnt lgkmcnt(0)")
    a("s_barrier")
    for g in range(4):
        for q in range(2):
            a(f"ds_read_b128 {vr(RD+16*g+4*q,4)}, v{V_X} offset:{g*16384+q*1024}")
    a(f"v_add_u32 v{V_X}, {LDS_G}, v{V_X}")
    for g in range(4):
        for q in range(2):
            a(f"ds_read_b128 {vr(RD+16*g+8+4*q,4)}, v{V_X} offset:{g*16384+q*1024}")
    a("s_waitcnt lgkmcnt(0)")
    for r in range(16):
        a(f"v_add_f32 v{RD+r}, v{RD+r}, v{RD+16+r}")
        a(f"v_add_f32 v{RD+32+r}, v{RD+32+r}, v{RD+48+r}")
    for r in range(16):
        a(f"v_add_f32 v{RD+r}, v{RD+r}, v{RD+32+r}")
    SS, DN = RD, RD + 8
    for r in range(8): a(f"v_mul_f32 v{TT+r}, 0xbfb8aa3b, v{DN+r}")
    for r in range(8): a(f"v_exp_f32 v{TT+r}, v{TT+r}")
    for r in range(8): a(f"v_add_f32 v{TT+r}, 1.0, v{TT+r}")
    for r in range(8): a(f"v_rcp_f32 v{TT+r}, v{TT+r}")
    for r in range(8): a(f"v_mul_f32 v{DN+r}, v{DN+r}, v{TT+r}")
    a("s_waitcnt vmcnt(0)")
    for r in range(4):
        a(f"v_lshlrev_b32 v{TT+2*r}, 16, v{XV+r}")
        a(f"v_and_b32 v{TT+2*r+1}, 0xffff0000, v{XV+r}")
    for r in range(8): a(f"v_fma_f32 v{TT+r}, v{SS+r}, v{DN+r}, v{TT+r}")
    for r in range(4): a(f"v_cvt_pk_bf16_f32 v{XV+r}, v{TT+2*r}, v{TT+2*r+1}")
    a(f"buffer_store_dwordx4 {vr(XV,4)}, v{V_XO}, s[{SRD_OUT}:{SRD_OUT+3}], s{S_T2} offen")

def gen_fused(a):
    global FUSED
    FUSED = True; gen2.FUSED = True
    gen2.gen_k1(a)
    gen_k23(a, True)
    FUSED = False; gen2.FUSED = False

def gen_k23(a, fused=False):
    st = Stamper(a, STAMP)
    if not fused:
        a("s_cmp_ge_u32 s2, 256")
        a("s_cbranch_scc1 K23_END")
    st()
    a("s_load_dwordx2 s[10:11], s[0:1], 72")
    a("s_load_dwordx2 s[14:15], s[0:1], 48")
    a("s_load_dwordx2 s[16:17], s[0:1], 16")
    a("s_load_dwordx2 s[18:19], s[0:1], 0")
    a("s_load_dwordx2 s[56:57], s[0:1], 56")
    a("v_and_b32 v1, 63, v0")
    a("v_lshrrev_b32 v6, 6, v0")
    a("v_lshlrev_b32 v2, 4, v1")
    a("v_readfirstlane_b32 s3, v6")
    a(f"v_mov_b32 v6, {LDS_SYNC}")
    a("v_mov_b32 v8, 0")
    a("v_mov_b32 v9, 0")
    a("v_mov_b32 v10, 0")
    a("v_mov_b32 v11, 0")
    a("ds_write_b128 v6, v[8:11]")
    a("s_and_b32 s36, s2, 7")
    a("s_lshr_b32 s37, s2, 3")
    a("s_lshl_b32 s52, s36, 2")
    a("s_and_b32 s38, s37, 3")
    a("s_add_u32 s52, s52, s38")
    a("s_lshr_b32 s53, s37, 2")
    a("s_waitcnt lgkmcnt(0)")
    a("s_barrier")
    a("s_mov_b32 s97, s3")
    a("s_cmp_lt_u32 s3, 4")
    a("s_cbranch_scc1 K23_ATT")
    a("s_sub_u32 s3, s3, 4")
    gemm(a, st)
    a("s_branch K23_FIN")
    a.label("K23_ATT")
    st.n = 1
    attention(a, st)
    a.label("K23_FIN")
    final(a, st)
    a.label("K23_END0")
    if STAMP:
        a("s_waitcnt vmcnt(0)")
        st.n = 8
        st()
        a("s_load_dwordx2 s[16:17], s[0:1], 72")
        a("s_waitcnt lgkmcnt(0)")
        a("s_add_u32 s16, s16, 0x4000000")
        a("s_addc_u32 s17, s17, 0")
        a("s_mov_b32 s18, 65536")
        a("s_mov_b32 s19, 0x00020000")
        a("s_cmp_lg_u32 s2, 37")
        a("s_cbranch_scc1 K23_END")
        a("s_lshl_b32 s15, s97, 7")
        a("v_and_b32 v241, 63, v0")
        a("v_lshlrev_b32 v241, 2, v241")
        a("v_cmp_gt_u32 vcc, 128, v241")
        a("s_and_saveexec_b64 s[98:99], vcc")
        a("buffer_store_dword v252, v241, s[16:19], s15 offen")
    a.label("K23_END")
    if fused: a.label("K1_END")
    a("s_endpgm")

K1 = ("k1_kernel", gen2.gen_k1, 256, 512, 163840, 252, 102)
K23 = ("k23_kernel", gen_k23, 256, 512, 131088 + 112, 256, 102)
KF = (NAME + "_kernel", gen_fused, 256, 512, 163840, 256, 102)
if __name__ == "__main__":
    gen2.STF = ' sc0 sc1'
    build([K1, K23], "all3.s")
    build([KF], "fused.s")
    STAMP = True
    build([K1, K23], "all3st.s")
```

```python
import gen2, gen6, sys
from gen import build, NAME
class St3:
    cnt = [1]
    wave = 0
    keep = None
    def __init__(self, a, on, **kw):
        self.a = a; self.on = True; self.vreg = 252; self._n = 0
    @property
    def n(self): return self._n
    @n.setter
    def n(self, v): self._n = v
    def __call__(self):
        idx = St3.calls[0]; St3.calls[0] += 1
        if idx not in St3.keep: return
        i = St3.cnt[0]; St3.cnt[0] += 1
        self.a("s_memtime s[100:101]")
        self.a("s_waitcnt lgkmcnt(0)")
        self.a(f"v_writelane_b32 v252, s100, {i}")
    def dump(self, *a_): pass
def build_diag(path, wave, keep):
    St3.cnt = [1]; St3.calls = [0]; St3.keep = keep
    gen2.Stamper = St3; gen6.Stamper = St3
    gen2.STAMP = False; gen6.STAMP = False; gen2.STF = ' sc0 sc1'
    def g(a):
        gen6.gen_fused(a)
        assert a.lines[-1] == "s_endpgm"
        a.lines.pop()
        a("s_waitcnt vmcnt(0)")
        a("s_memtime s[100:101]")
        a("s_waitcnt lgkmcnt(0)")
        a(f"v_writelane_b32 v252, s100, 15")
        a("s_load_dwordx2 s[16:17], s[0:1], 64")
        a("s_waitcnt lgkmcnt(0)")
        a("s_mov_b32 s18, 256")
        a("s_mov_b32 s19, 0x00020000")
        a("s_cmp_lg_u32 s2, 37")
        a("s_cbranch_scc1 DG_END")
        a(f"s_cmp_lg_u32 s97, {wave}")
        a("s_cbranch_scc1 DG_END")
        a("v_and_b32 v241, 63, v0")
        a("v_lshlrev_b32 v241, 2, v241")
        a("v_cmp_gt_u32 vcc, 64, v241")
        a("s_and_saveexec_b64 s[98:99], vcc")
        a("v_cmp_lt_u32 vcc, 0, v241")
        a("s_and_b64 exec, exec, vcc")
        a("buffer_store_dword v252, v241, s[16:19], 0 offen")
        a("DG_END:")
        a("s_endpgm")
    build([(NAME + "_kernel", g, 256, 512, 163840, 256, 102)], path)
    print(path, "total st() calls", St3.calls[0], "kept", St3.cnt[0] - 1)

build_diag("v_d0.s", 0, {0, 2, 5, 9, 12, 15, 19, 20, 24, 25, 26, 27, 28, 29})
build_diag("v_d4.s", 4, {0, 2, 5, 9, 12, 15, 19, 20, 21, 22, 23})
```

```python
import sys
from asmlib import Asm
from gen import vr, sr, srd, kernel_desc, HEADER, build, NAME, WS_QKV, WS_H, WS_O, WS_SIZE

class Stamper:
    def __init__(self, a, on, base=64, vtmp=(250, 251)):
        self.a, self.on, self.n, self.base = a, on, 0, base
        self.vreg = 252
    def __call__(self):
        if not self.on: return
        self.a(f"s_memtime s[100:101]")
        self.a("s_waitcnt lgkmcnt(0)")
        self.a(f"v_writelane_b32 v{self.vreg}, s100, {self.n}")
        self.n += 1
    def dump(self, wg, swave, v0, v1, tag):
        if not self.on: return
        a = self.a
        a("s_load_dwordx2 s[16:17], s[0:1], 64")
        a("s_waitcnt lgkmcnt(0)")
        a("s_mov_b32 s18, 65536")
        a("s_mov_b32 s19, 0x00020000")
        a(f"s_cmp_lg_u32 s2, {wg}")
        a(f"s_cbranch_scc1 NOST_{tag}")
        a(f"s_lshl_b32 s15, s{swave}, 7")
        a(f"v_and_b32 v{v1}, 63, v0")
        a(f"v_lshlrev_b32 v{v1}, 2, v{v1}")
        a(f"v_cmp_gt_u32 vcc, 128, v{v1}")
        a(f"s_and_saveexec_b64 s[98:99], vcc")
        a(f"buffer_store_dword v{self.vreg}, v{v1}, s[16:19], s15 offen")
        a(f"s_mov_b64 exec, s[98:99]")
        a(f"NOST_{tag}:")

STAMP = False
TOUCH = False
FUSED = False
PFW = True
ROT = True
LIM = True
RT = False
STF = ''

def gen_k1(a):
    st = Stamper(a, STAMP)
    PF = 3
    V_LANE, V_L16 = 1, 2
    V_VOFF = 3
    V_TR = 8
    V_WF = 20
    V_ACC = 36
    V_XN = 116
    V_T = 228
    V_PAD = 236
    V_PFD = 244
    V_X = 238
    S_W, S_TM, S_TN, S_T, S_G = 3, 33, 34, 35, 36
    S_5G, S_TOK, S_SUB, S_BLK = 37, 38, 39, 32
    S_MHI = 40
    S_M = 42
    S_SO = 44
    S_INC = 49
    S_T0, S_T1, S_T2, S_T3 = 54, 55, 56, 57
    S_M0 = 58
    S_STO = 59
    SRD_X, SRD_WS = 4, 20
    SRD_J = 60
    if STAMP: st.base = 80

    a("s_cmp_ge_u32 s2, 256")
    a("s_cbranch_scc1 K1_END")
    if RT: a("s_memrealtime s[98:99]")
    st()
    a("s_load_dwordx2 s[16:17], s[0:1], 0")
    a("s_load_dwordx2 s[8:9], s[0:1], 8")
    a("s_load_dwordx4 s[12:15], s[0:1], 32")
    a("s_load_dwordx2 s[10:11], s[0:1], 72")
    a("s_load_dwordx2 s[94:95], s[0:1], 48")
    a("s_load_dwordx2 s[96:97], s[0:1], 16")
    a("s_mov_b32 s93, 401408")
    a(f"v_and_b32 v{V_LANE}, 63, v0")
    a(f"v_lshrrev_b32 v{V_X}, 6, v0")
    a(f"v_lshlrev_b32 v{V_L16}, 4, v{V_LANE}")
    a(f"v_readfirstlane_b32 s{S_W}, v{V_X}")
    a(f"s_and_b32 s{S_T0}, s2, 7")
    a(f"s_lshr_b32 s{S_T1}, s2, 3")
    a(f"s_and_b32 s{S_T}, s{S_T0}, 1")
    a(f"s_lshl_b32 s{S_T}, s{S_T}, 3")
    a(f"s_and_b32 s{S_T2}, s{S_T1}, 7")
    a(f"s_add_u32 s{S_T}, s{S_T}, s{S_T2}")
    a(f"s_lshr_b32 s{S_G}, s{S_T0}, 1")
    a(f"s_lshl_b32 s{S_G}, s{S_G}, 2")
    a(f"s_lshr_b32 s{S_T2}, s{S_T1}, 3")
    a(f"s_add_u32 s{S_G}, s{S_G}, s{S_T2}")
    a(f"s_mul_i32 s{S_5G}, s{S_G}, 5")
    S_RHO = 24
    a(f"s_lshr_b32 s{S_T0}, s{S_G}, 1")
    a(f"s_mul_i32 s{S_T1}, s{S_T0}, 3")
    a(f"s_add_u32 s{S_T1}, s{S_T1}, 56")
    a(f"s_mul_i32 s{S_T2}, s{S_T0}, 7")
    a(f"s_and_b32 s{S_T3}, s{S_G}, 1")
    a(f"s_cmp_eq_u32 s{S_T3}, 0")
    a(f"s_cselect_b32 s{S_T0}, 0, 2")
    a(f"s_add_u32 s{S_RHO}, s{S_T1}, s{S_T0}")
    a(f"s_add_u32 s{S_T1}, s{S_T1}, 1")
    a(f"s_add_u32 s{S_T0}, s{S_T2}, 3")
    a(f"s_cmp_eq_u32 s{S_T3}, 0")
    a(f"s_cselect_b32 s{S_RHO+1}, s{S_T1}, s{S_T0}")
    a(f"s_cselect_b32 s{S_T0}, 0, 4")
    a(f"s_add_u32 s{S_RHO+2}, s{S_T2}, s{S_T0}")
    a(f"s_add_u32 s{S_RHO+3}, s{S_RHO+2}, 1")
    a(f"s_add_u32 s{S_RHO+4}, s{S_RHO+2}, 2")
    a(f"s_and_b32 s{S_TM}, s{S_W}, 3")
    a(f"s_lshr_b32 s{S_TN}, s{S_W}, 2")
    a(f"s_and_b32 s{S_SUB}, s{S_W}, 1")
    a(f"s_lshr_b32 s{S_BLK}, s{S_W}, 1")
    S_WR = 31 + 55
    a(f"s_and_b32 s{S_WR}, s{S_G}, {3 if ROT else 0}")
    a(f"s_lshl_b32 s{S_WR}, s{S_WR}, 1")
    a(f"s_add_u32 s{S_WR}, s{S_WR}, s{S_W}")
    a(f"s_and_b32 s{S_WR}, s{S_WR}, 7")
    a(f"s_lshl_b32 s{S_TOK}, s{S_T}, 2")
    a(f"s_add_u32 s{S_TOK}, s{S_TOK}, s{S_TM}")
    a(f"s_mov_b32 s{S_MHI}, 0")
    a(f"s_mov_b32 s{S_MHI+1}, -1")
    R, C, MH, H, MG, X0, X1, X2, TQ, TG, VQ, VG = [V_X + i for i in range(12)]
    a(f"v_bfe_u32 v{R}, v{V_LANE}, 2, 2")
    a(f"v_and_b32 v{C}, 3, v{V_LANE}")
    a(f"v_bfe_u32 v{MH}, v{V_LANE}, 4, 1")
    a(f"v_lshrrev_b32 v{H}, 5, v{V_LANE}")
    a(f"v_lshl_add_u32 v{MG}, v{MH}, 2, v{C}")
    a(f"v_and_b32 v{X0}, 1, v{MG}")
    a(f"v_lshlrev_b32 v{X0}, 2, v{X0}")
    a(f"v_lshrrev_b32 v{X1}, 1, v{MG}")
    a(f"v_or_b32 v{X0}, v{X0}, v{X1}")
    a(f"v_min_u32 v{X0}, 6, v{X0}")
    a(f"s_mul_i32 s{S_T0}, s{S_TN}, 56")
    a(f"v_lshlrev_b32 v{X0}, 3, v{X0}")
    a(f"v_add_u32 v{X0}, s{S_T0}, v{X0}")
    a(f"v_lshrrev_b32 v{X1}, 4, v{X0}")
    a(f"v_bfe_u32 v{X2}, v{R}, 1, 1")
    a(f"v_lshlrev_b32 v{X2}, 2, v{X2}")
    a(f"v_xor_b32 v{X1}, v{X1}, v{X2}")
    a(f"v_and_b32 v{X0}, 15, v{X0}")
    a(f"v_lshl_add_u32 v{X0}, v{X1}, 4, v{X0}")
    a(f"v_lshl_add_u32 v{X2}, v{H}, 3, v{R}")
    a(f"v_lshl_add_u32 v{TQ}, v{X2}, 7, v{X0}")
    a(f"s_lshl_b32 s{S_T0}, s{S_TN}, 1")
    a(f"v_and_b32 v{X0}, 1, v{C}")
    a(f"v_add_u32 v{X0}, s{S_T0}, v{X0}")
    a(f"v_lshlrev_b32 v{X1}, 1, v{MH}")
    a(f"v_xor_b32 v{X0}, v{X0}, v{X1}")
    a(f"v_lshlrev_b32 v{X0}, 4, v{X0}")
    a(f"v_lshrrev_b32 v{X1}, 1, v{C}")
    a(f"v_lshl_add_u32 v{X0}, v{X1}, 3, v{X0}")
    a(f"v_lshl_add_u32 v{X0}, v{X2}, 6, v{X0}")
    a(f"v_lshl_add_u32 v{TG}, v{MH}, 10, v{X0}")
    a(f"v_lshrrev_b32 v{X0}, 3, v{V_LANE}")
    a(f"v_and_b32 v{X1}, 7, v{V_LANE}")
    a(f"v_bfe_u32 v{X2}, v{V_LANE}, 4, 1")
    a(f"v_lshlrev_b32 v{X2}, 2, v{X2}")
    a(f"v_xor_b32 v{X1}, v{X1}, v{X2}")
    a(f"v_lshlrev_b32 v{X1}, 4, v{X1}")
    a(f"s_movk_i32 s{S_T0}, 2688")
    a(f"v_mad_u32_u24 v{VQ}, v{X0}, s{S_T0}, v{X1}")
    a(f"v_lshrrev_b32 v{X0}, 2, v{V_LANE}")
    a(f"v_lshlrev_b32 v{X1}, 4, v{C}")
    a(f"s_movk_i32 s{S_T0}, 3584")
    a(f"v_mad_u32_u24 v{VG}, v{X0}, s{S_T0}, v{X1}")
    a(f"s_lshl_b32 s{S_T0}, s{S_SUB}, 5")
    a(f"v_xor_b32 v{VG}, s{S_T0}, v{VG}")
    V_XG, V_XW, V_XR = 20, 21, 22
    a(f"v_lshrrev_b32 v{X0}, 2, v{V_LANE}")
    a(f"s_movk_i32 s{S_T0}, 896")
    a(f"v_lshlrev_b32 v{X1}, 4, v{C}")
    a(f"v_mad_u32_u24 v{V_XG}, v{X0}, s{S_T0}, v{X1}")
    a(f"s_and_b32 s{S_T1}, s{S_WR}, 1")
    a(f"s_lshl_b32 s{S_T1}, s{S_T1}, 4")
    a(f"v_add_u32 v{X0}, s{S_T1}, v{X0}")
    a(f"s_movk_i32 s{S_T0}, 464")
    a(f"v_mad_u32_u24 v{V_XW}, v{X0}, s{S_T0}, v{X1}")
    a(f"s_lshr_b32 s{S_T1}, s{S_WR}, 1")
    a(f"s_lshl_b32 s{S_T1}, s{S_T1}, 15")
    a(f"s_add_u32 s{S_T1}, s{S_T1}, 16384")
    a(f"v_add_u32 v{V_XW}, s{S_T1}, v{V_XW}")
    a(f"v_and_b32 v{X0}, 31, v{V_LANE}")
    a(f"v_lshlrev_b32 v{X1}, 4, v{H}")
    a(f"v_mad_u32_u24 v{V_XR}, v{X0}, s{S_T0}, v{X1}")
    a(f"s_lshl_b32 s{S_T1}, s{S_TM}, 15")
    a(f"s_add_u32 s{S_T1}, s{S_T1}, 16384")
    a(f"v_add_u32 v{V_XR}, s{S_T1}, v{V_XR}")
    a(f"s_lshl_b32 s{S_M0}, s{S_W}, 10")
    a("s_waitcnt lgkmcnt(0)")
    st()
    srd(a, SRD_X, 16, 1835008)
    srd(a, SRD_WS, 10, WS_SIZE)
    SRD_DBG = 80
    if FUSED:
        a("s_load_dwordx2 s[80:81], s[0:1], 64")
        a("s_mov_b32 s82, 256")
        a("s_mov_b32 s83, 0x00020000")
        a("s_waitcnt lgkmcnt(0)")
    a("s_cmp_lg_u32 s2, 0")
    a("s_cbranch_scc1 K1_NOZ")
    a(f"s_cmp_lg_u32 s{S_W}, 0")
    a("s_cbranch_scc1 K1_NOZ")
    a(f"v_lshlrev_b32 v{X0}, 7, v{V_LANE}")
    a(f"v_mov_b32 v{X1}, 0")
    a(f"s_mov_b32 s{S_T0}, 0xF00000")
    a(f"buffer_store_dword v{X1}, v{X0}, s[{SRD_WS}:{SRD_WS+3}], s{S_T0} offen sc0 sc1")
    if FUSED:
        a(f"s_mov_b32 s{S_T0}, 0xF02000")
        a(f"buffer_store_dword v{X1}, v{X0}, s[{SRD_WS}:{SRD_WS+3}], s{S_T0} offen sc0 sc1")
        a("s_waitcnt vmcnt(0)")
        a(f"v_mov_b32 v{X0}, 0")
        a(f"v_mov_b32 v{X1}, 1")
        a("s_mov_b64 exec, 1")
        a(f"buffer_store_dword v{X1}, v{X0}, s[{SRD_DBG}:{SRD_DBG+3}], 0 offen sc0 sc1")
        a("s_mov_b64 exec, -1")
    a.label("K1_NOZ")
    if TOUCH:
        SRD_TMP = 84
        a(f"s_cmp_ge_u32 s{S_W}, 5")
        a("s_cbranch_scc1 K1_TX")
        a(f"v_min_u32 v{X0}, 55, v{V_LANE}")
        a(f"s_and_b32 s{S_T0}, s{S_T}, 7")
        a(f"s_mul_i32 s{S_T0}, s{S_T0}, 56")
        a(f"v_add_u32 v{X0}, s{S_T0}, v{X0}")
        a(f"s_add_u32 s{S_T1}, s{S_5G}, s{S_W}")
        a(f"s_cmp_lt_u32 s{S_T1}, 56")
        a("s_cbranch_scc0 K1_TQ")
        a(f"s_movk_i32 s{S_T2}, 3584")
        a(f"v_mul_u32_u24 v{X0}, s{S_T2}, v{X0}")
        a(f"s_lshl_b32 s{S_T1}, s{S_T1}, 6")
        srd(a, SRD_TMP, 12, 1605632)
        a(f"buffer_load_dword v{X1}, v{X0}, s[{SRD_TMP}:{SRD_TMP+3}], s{S_T1} offen")
        a(f"s_mov_b32 s{SRD_TMP}, s14")
        a(f"s_mov_b32 s{SRD_TMP+1}, s15")
        a(f"buffer_load_dword v{X2}, v{X0}, s[{SRD_TMP}:{SRD_TMP+3}], s{S_T1} offen")
        a("s_branch K1_TX")
        a.label("K1_TQ")
        a(f"s_movk_i32 s{S_T2}, 2688")
        a(f"v_mul_u32_u24 v{X0}, s{S_T2}, v{X0}")
        a(f"s_sub_u32 s{S_T1}, s{S_T1}, 56")
        a(f"s_mul_i32 s{S_T1}, s{S_T1}, 112")
        srd(a, SRD_TMP, 8, 1204224)
        a(f"buffer_load_dword v{X1}, v{X0}, s[{SRD_TMP}:{SRD_TMP+3}], s{S_T1} offen")
        a(f"buffer_load_dword v{X2}, v{X0}, s[{SRD_TMP}:{SRD_TMP+3}], s{S_T1} offen offset:108")
        a.label("K1_TX")
    XR = V_XN
    a(f"s_lshl_b32 s{S_T0}, s{S_WR}, 4")
    a(f"s_lshl_b32 s{S_T1}, s{S_T}, 7")
    a(f"s_add_u32 s{S_T1}, s{S_T1}, s{S_T0}")
    a(f"s_mul_i32 s{S_T1}, s{S_T1}, 896")
    for i in range(14):
        a(f"buffer_load_dwordx4 {vr(XR+4*i,4)}, v{V_XG}, s[{SRD_X}:{SRD_X+3}], s{S_T1} offen offset:{64*i}")
    a(f"s_cmp_eq_u32 s{S_SUB}, 1")
    a("s_cselect_b64 s[18:19], s[14:15], s[12:13]")
    a(f"s_mul_i32 s{S_T2}, s{S_BLK}, 57344")
    a(f"s_mul_i32 s{S_T3}, s{S_BLK}, 43008")
    a(f"s_mul_i32 s{S_T0}, s{S_SUB}, 21504")
    a(f"s_add_u32 s{S_T3}, s{S_T3}, s{S_T0}")
    a("s_mov_b32 s30, 1204224")
    a("s_mov_b32 s31, 172032")
    a("s_mov_b32 s29, 512")
    for j in range(5):
        sj = SRD_J + 4 * j
        a(f"s_mov_b32 s{S_T0}, s{S_RHO+j}")
        a(f"s_lshl_b32 s{S_T1}, s{S_T0}, 6")
        a(f"s_add_u32 s{S_T1}, s{S_T1}, s{S_T2}")
        a(f"s_sub_u32 s{S_STO}, s{S_T0}, 56")
        a(f"s_mul_i32 s{S_STO}, s{S_STO}, 112")
        a(f"s_add_u32 s{S_STO}, s{S_STO}, s{S_T3}")
        a(f"s_cmp_lt_u32 s{S_T0}, 56")
        a(f"s_cselect_b64 s[{sj}:{sj+1}], s[18:19], s[8:9]")
        a(f"s_cselect_b32 s{sj+2}, 1605632, s30")
        a(f"s_mov_b32 s{sj+3}, 0x00020000")
        a(f"s_cselect_b32 s{S_SO+j}, s{S_T1}, s{S_STO}")
        a(f"s_cselect_b32 s{S_INC+j}, 229376, s31")
        a(f"s_cselect_b64 s[{S_M}:{S_M+1}], -1, 0")
        a(f"v_cndmask_b32 v{V_VOFF+j}, v{VQ}, v{VG}, s[{S_M}:{S_M+1}]")
        a(f"v_cndmask_b32 v{V_TR+2*j}, v{TQ}, v{TG}, s[{S_M}:{S_M+1}]")
        a(f"s_cselect_b32 s{S_T1}, 256, s29")
        a(f"v_add_u32 v{V_TR+2*j}, {j*32768}, v{V_TR+2*j}")
        a(f"v_add_u32 v{V_TR+2*j+1}, s{S_T1}, v{V_TR+2*j}")
    SRD_PF, S_PF = 88, 92
    a("s_lshr_b32 s92, s2, 3")
    a("s_lshl_b32 s92, s92, 3")
    a(f"s_add_u32 s92, s92, s{S_W}")
    a("s_cmp_lt_u32 s92, 196")
    a("s_cselect_b64 s[88:89], s[94:95], s[96:97]")
    a("s_cselect_b32 s90, 1605632, s93")
    a("s_mov_b32 s91, 0x00020000")
    a("s_cselect_b32 s93, 0, 196")
    a("s_sub_u32 s92, s92, s93")
    a("s_lshl_b32 s92, s92, 13")
    a("s_barrier")

    def dma_group(g, js=range(5)):
        slot = g % 4
        for j in js:
            sj = SRD_J + 4 * j
            a(f"s_add_u32 m0, s{S_M0}, {j*32768 + slot*8192}")
            a("s_nop 0")
            a(f"buffer_load_dwordx4 v{V_VOFF+j}, s[{sj}:{sj+3}], s{S_SO+j} offen lds")
            a(f"s_add_u32 s{S_SO+j}, s{S_SO+j}, s{S_INC+j}")
    dma_group(0, (0, 1)); dma_group(1, (0, 1)); dma_group(0, (2, 3, 4)); dma_group(1, (2, 3, 4))
    a("s_waitcnt vmcnt(23)")
    st()
    SUM = [V_X + 0, V_X + 1]; SQ = [V_X + 2, V_X + 3]
    for r in SUM + SQ: a(f"v_mov_b32 v{r}, 0")
    a(f"s_mov_b32 s{S_T0}, 0x3f803f80")
    for i in range(56):
        a(f"v_dot2_f32_bf16 v{SUM[i&1]}, v{XR+i}, s{S_T0}, v{SUM[i&1]}")
        a(f"v_dot2_f32_bf16 v{SQ[i&1]}, v{XR+i}, v{XR+i}, v{SQ[i&1]}")
        if i % 4 == 3 and i < 55: a(f"s_waitcnt vmcnt({10 + 12 - i//4})")
    a(f"v_add_f32 v{SUM[0]}, v{SUM[0]}, v{SUM[1]}")
    a(f"v_add_f32 v{SQ[0]}, v{SQ[0]}, v{SQ[1]}")
    for perm in ("[1,0,3,2]", "[2,3,0,1]"):
        a(f"v_add_f32_dpp v{SUM[0]}, v{SUM[0]}, v{SUM[0]} quad_perm:{perm} row_mask:0xf bank_mask:0xf")
        a(f"v_add_f32_dpp v{SQ[0]}, v{SQ[0]}, v{SQ[0]} quad_perm:{perm} row_mask:0xf bank_mask:0xf")
    M, VAR, RR, CC = V_X + 4, V_X + 5, V_X + 6, V_X + 7
    a(f"v_mul_f32 v{M}, 0x3b124925, v{SUM[0]}")
    a(f"v_mul_f32 v{VAR}, 0x3b124925, v{SQ[0]}")
    a(f"v_fma_f32 v{VAR}, -v{M}, v{M}, v{VAR}")
    a(f"v_max_f32 v{VAR}, 0, v{VAR}")
    def rbf(r):
        a(f"v_cvt_pk_bf16_f32 v{r}, v{r}, v{r}")
        a(f"v_lshlrev_b32 v{r}, 16, v{r}")
    rbf(M); rbf(VAR)
    a(f"v_add_f32 v{VAR}, 0x3727c5ac, v{VAR}")
    rbf(VAR)
    a(f"v_sqrt_f32 v{VAR}, v{VAR}")
    rbf(VAR)
    a(f"v_rcp_f32 v{RR}, v{VAR}")
    a(f"v_mul_f32 v{CC}, v{M}, v{RR}")
    a(f"v_sub_f32 v{CC}, 0, v{CC}")
    XO = V_XN + 56
    TU = V_ACC
    for i0 in range(0, 56, 8):
        for i in range(8): a(f"v_lshlrev_b32 v{TU+2*i}, 16, v{XR+i0+i}")
        for i in range(8): a(f"v_and_b32 v{TU+2*i+1}, 0xffff0000, v{XR+i0+i}")
        for i in range(16): a(f"v_fma_f32 v{TU+i}, v{TU+i}, v{RR}, v{CC}")
        for i in range(8): a(f"v_cvt_pk_bf16_f32 v{XO+i0+i}, v{TU+2*i}, v{TU+2*i+1}")
        if i0 == 24:
            for ii in range(7):
                a(f"ds_write_b128 v{V_XW}, {vr(XO+4*ii,4)} offset:{64*ii}")
    st()
    a("s_waitcnt lgkmcnt(0)")
    a("s_barrier")
    for s_ in range(14):
        a(f"ds_read_b128 {vr(V_XN+4*s_,4)}, v{V_XR} offset:{32*s_}")
    a("s_waitcnt lgkmcnt(0)")
    a("s_barrier")
    for i in range(7):
        a(f"ds_write_b128 v{V_XW}, {vr(XO+4*(7+i),4)} offset:{64*i}")
    a("s_waitcnt lgkmcnt(0)")
    a("s_barrier")
    for s_ in range(14):
        a(f"ds_read_b128 {vr(V_XN+4*(14+s_),4)}, v{V_XR} offset:{32*s_}")
    a("s_waitcnt lgkmcnt(0) vmcnt(0)")
    st()
    a("s_barrier")
    st()
    dma_group(2, (0, 1)); dma_group(3, (0, 1)); dma_group(2, (2, 3, 4)); dma_group(3, (2, 3, 4))

    steps = [(s_, j) for s_ in range(28) for j in (0, 1)] + [(s_, j) for s_ in range(28) for j in (2, 3, 4)]
    NST = len(steps)
    def stage_of(n):
        return (n // 8) if n < 56 else 7 + (n - 56) // 12
    def tr_reads(m):
        s, j = steps[m]
        g, b = s // 4, s % 4
        off = (g % 4) * 8192 + b * 2048
        w = V_WF + 4 * (m % 4)
        a(f"ds_read_b64_tr_b16 {vr(w,2)}, v{V_TR+2*j} offset:{off}")
        a(f"ds_read_b64_tr_b16 {vr(w+2,2)}, v{V_TR+2*j+1} offset:{off}")
    def epilogue_tile(j):
        A = V_ACC + 16 * j
        T = V_T
        o = []
        a(f"s_mov_b32 s{S_T0}, s{S_RHO+j}")
        a(f"s_cmp_lt_u32 s{S_T0}, 56")
        a(f"s_cbranch_scc1 K1_EGU{j}")
        a(f"s_sub_u32 s{S_T0}, s{S_T0}, 56")
        a(f"s_lshl_b32 s{S_T0}, s{S_T0}, 1")
        a(f"s_add_u32 s{S_T0}, s{S_T0}, s{S_TN}")
        a(f"s_cmp_ge_u32 s{S_T0}, 32")
        a(f"s_cselect_b32 s{S_T1}, 0x3f80, 0")
        a(f"v_mov_b32 v{V_PAD}, s{S_T1}")
        a(f"s_lshl_b32 s{S_T0}, s{S_T0}, 6")
        a(f"s_add_u32 s{S_T0}, s{S_T0}, s{S_TOK}")
        a(f"s_lshl_b32 s{S_STO}, s{S_T0}, 11")
        a("s_nop 4")
        for e in range(8):
            a(f"v_cvt_pk_bf16_f32 v{T+e}, v{A+2*e}, v{A+2*e+1}")
        a(f"v_cndmask_b32 v{T+6}, v{T+6}, v{V_PAD}, s[{S_MHI}:{S_MHI+1}]")
        a(f"v_cndmask_b32 v{T+7}, v{T+7}, 0, s[{S_MHI}:{S_MHI+1}]")
        a(f"buffer_store_dwordx4 {vr(T,4)}, v{V_L16}, s[{SRD_WS}:{SRD_WS+3}], s{S_STO} offen{STF}")
        a(f"buffer_store_dwordx4 {vr(T+4,4)}, v{V_L16}, s[{SRD_WS}:{SRD_WS+3}], s{S_STO} offen offset:1024{STF}")
        a(f"s_branch K1_EJ{j}")
        a.label(f"K1_EGU{j}")
        a(f"s_lshl_b32 s{S_T0}, s{S_T0}, 1")
        a(f"s_add_u32 s{S_T0}, s{S_T0}, s{S_TN}")
        a(f"s_mul_i32 s{S_T1}, s{S_TOK}, 112")
        a(f"s_add_u32 s{S_T0}, s{S_T0}, s{S_T1}")
        a(f"s_lshl_b32 s{S_STO}, s{S_T0}, 10")
        a(f"s_add_u32 s{S_STO}, s{S_STO}, {WS_H}")
        a("s_nop 6")
        for e in range(8):
            a(f"v_mul_f32 v{A+e}, v{A+e}, v{A+8+e}")
        for e in range(4):
            a(f"v_cvt_pk_bf16_f32 v{T+e}, v{A+2*e}, v{A+2*e+1}")
        a(f"buffer_store_dwordx4 {vr(T,4)}, v{V_L16}, s[{SRD_WS}:{SRD_WS+3}], s{S_STO} offen{STF}")
        a(f"buffer_store_dwordx4 {vr(T,4)}, v{V_L16}, s[{SRD_WS}:{SRD_WS+3}], s{S_STO} offen{STF}")
        a.label(f"K1_EJ{j}")
    def signal(off, tag):
        a(f"s_cmp_lg_u32 s{S_W}, 0")
        a(f"s_cbranch_scc1 K1_SG{tag}")
        a.label(f"K1_INITP{tag}")
        a(f"v_mov_b32 v{V_X+1}, 0")
        a(f"buffer_load_dword v{V_X}, v{V_X+1}, s[{SRD_DBG}:{SRD_DBG+3}], 0 offen sc0 sc1")
        a("s_waitcnt vmcnt(0)")
        a(f"v_readfirstlane_b32 s{S_T0}, v{V_X}")
        a(f"s_cmp_lg_u32 s{S_T0}, 0")
        a(f"s_cbranch_scc1 K1_INITOK{tag}")
        a("s_sleep 8")
        a(f"s_branch K1_INITP{tag}")
        a.label(f"K1_INITOK{tag}")
        a(f"s_lshl_b32 s{S_T0}, s{S_T}, 7")
        a(f"s_add_u32 s{S_T0}, s{S_T0}, {off}")
        a(f"v_mov_b32 v{V_X}, 1")
        a("s_mov_b64 exec, 1")
        a(f"buffer_atomic_add v{V_X}, v{V_X+1}, s[{SRD_WS}:{SRD_WS+3}], s{S_T0} offen sc1")
        a("s_mov_b64 exec, -1")
        a.label(f"K1_SG{tag}")
    vm = [("A", 2)] * 2 + [("A", 3)] * 2 + [("B", 2)] * 3 + [("B", 3)] * 3
    npf = [0]
    def prefetch(k):
        for _ in range(k):
            i = npf[0]
            if i >= 8: return
            npf[0] += 1
            a(f"s_add_u32 s{S_T0}, s{S_PF}, {i*1024}")
            a(f"buffer_load_dwordx4 {vr(V_PFD + 4*(i&1),4)}, v{V_L16}, s[{SRD_PF}:{SRD_PF+3}], s{S_T0} offen")
            vm.append(("P", i))
    def wait_tag(t):
        if t in vm:
            idx = max(i for i, x in enumerate(vm) if x == t)
            a(f"s_waitcnt vmcnt({len(vm)-1-idx})")
    issued = [0]
    limit = [15]
    def fill(n):
        while issued[0] <= min(n + PF, limit[0], NST - 1):
            tr_reads(issued[0]); issued[0] += 1
    def stage_start(i):
        return 8 * i if i < 7 else 56 + 12 * (i - 7)
    def stage_last(i):
        return stage_start(i + 1) - 1 if i < 13 else NST - 1
    for n in range(NST):
        i = stage_of(n)
        if n == stage_start(i) and n > 0:
            def tag(i_): return ("A", i_) if i_ < 7 else ("B", i_ - 7)
            want = i + 1 if (i + 1 <= 13 and i != 1) else i
            wait_tag(tag(want))
            if i == 9:
                wait_tag(("S", 0))
            a("s_barrier")
            st()
            limit[0] = max(limit[0], stage_last(want))
            if i == 9 and FUSED: signal(0xF02800, "q")
            if i < 7:
                if i + 3 <= 6:
                    dma_group(i + 3, (0, 1)); vm += [("A", i + 3)] * 2
            else:
                gb = i - 7
                if gb >= 1 and gb + 3 <= 6:
                    dma_group(gb + 3, (2, 3, 4)); vm += [("B", gb + 3)] * 3
            if PFW and i >= 8: prefetch(2)
        if n == 56 + 6:
            epilogue_tile(0); epilogue_tile(1)
            vm += [("S", 0)] * 4
        fill(n)
        a(f"s_waitcnt lgkmcnt({2*(issued[0]-1-n)})")
        s_, j = steps[n]
        acc = vr(V_ACC + 16 * j, 16)
        a(f"v_mfma_f32_32x32x16_bf16 {acc}, {vr(V_WF+4*(n%4),4)}, {vr(V_XN+4*s_,4)}, {'0' if s_ == 0 else acc}")
    if PFW: a("s_waitcnt vmcnt(0)")
    st()
    for j in (2, 3, 4): epilogue_tile(j)
    if RT:
        a("s_waitcnt vmcnt(0)")
        a("s_memrealtime s[100:101]")
        a("s_waitcnt lgkmcnt(0)")
        a(f"s_cmp_lg_u32 s{S_W}, 0")
        a("s_cbranch_scc1 K1_END")
        a("v_mov_b32 v240, s98")
        a("v_mov_b32 v241, s100")
        a("s_lshl_b32 s15, s2, 3")
        a("s_add_u32 s15, s15, 0x4000000")
        a("v_mov_b32 v242, 0")
        a(f"buffer_store_dwordx2 v[240:241], v242, s[{SRD_WS}:{SRD_WS+3}], s15 offen")
    if STAMP:
        a("s_waitcnt vmcnt(0)")
        st()
        st.dump(37, S_W, 240, 241, "k1")
    if FUSED:
        a("s_waitcnt vmcnt(0)")
        a("s_barrier")
        signal(0xF02000, "h")
        return
    a.label("K1_END")
    a("s_endpgm")

if __name__ == "__main__":
    build([("k1_kernel", gen_k1, 256, 512, 163840, 252, 102)], "k1.s")
    STAMP = True
    build([("k1_kernel", gen_k1, 256, 512, 163840, 256, 102)], "k1st.s")
```

```python
import sys
from asmlib import Asm
from gen import vr, sr, srd, kernel_desc, HEADER, build, NAME, WS_QKV, WS_H, WS_O, WS_SIZE

class Stamper:
    def __init__(self, a, on, base=64, vtmp=(250, 251)):
        self.a, self.on, self.n, self.base = a, on, 0, base
        self.vreg = 252
    def __call__(self):
        if not self.on: return
        self.a(f"s_memtime s[100:101]")
        self.a("s_waitcnt lgkmcnt(0)")
        self.a(f"v_writelane_b32 v{self.vreg}, s100, {self.n}")
        self.n += 1
    def dump(self, wg, swave, v0, v1, tag):
        if not self.on: return
        a = self.a
        a("s_load_dwordx2 s[16:17], s[0:1], 64")
        a("s_waitcnt lgkmcnt(0)")
        a("s_mov_b32 s18, 65536")
        a("s_mov_b32 s19, 0x00020000")
        a(f"s_cmp_lg_u32 s2, {wg}")
        a(f"s_cbranch_scc1 NOST_{tag}")
        a(f"s_lshl_b32 s15, s{swave}, 7")
        a(f"v_and_b32 v{v1}, 63, v0")
        a(f"v_lshlrev_b32 v{v1}, 2, v{v1}")
        a(f"v_cmp_gt_u32 vcc, 128, v{v1}")
        a(f"s_and_saveexec_b64 s[98:99], vcc")
        a(f"buffer_store_dword v{self.vreg}, v{v1}, s[16:19], s15 offen")
        a(f"s_mov_b64 exec, s[98:99]")
        a(f"NOST_{tag}:")

STAMP = False
TOUCH = False
FUSED = False
KVPF = True
SIGST = 11
PFW = True
ROT = True
LIM = True
RT = False
STF = ''

def gen_k1(a):
    st = Stamper(a, STAMP)
    PF = 3
    V_LANE, V_L16 = 1, 2
    V_VOFF = 3
    V_TR = 8
    V_WF = 20
    V_ACC = 36
    V_XN = 116
    V_T = 228
    V_PAD = 236
    V_PFD = 244
    V_X = 238
    S_W, S_TM, S_TN, S_T, S_G = 3, 33, 34, 35, 36
    S_5G, S_TOK, S_SUB, S_BLK = 37, 38, 39, 32
    S_MHI = 40
    S_M = 42
    S_SO = 44
    S_INC = 49
    S_T0, S_T1, S_T2, S_T3 = 54, 55, 56, 57
    S_M0 = 58
    S_STO = 59
    SRD_X, SRD_WS = 4, 20
    SRD_J = 60
    if STAMP: st.base = 80

    a("s_cmp_ge_u32 s2, 256")
    a("s_cbranch_scc1 K1_END")
    if RT: a("s_memrealtime s[98:99]")
    st()
    a("s_load_dwordx2 s[16:17], s[0:1], 0")
    a("s_load_dwordx2 s[8:9], s[0:1], 8")
    a("s_load_dwordx4 s[12:15], s[0:1], 32")
    a("s_load_dwordx2 s[10:11], s[0:1], 72")
    a("s_load_dwordx2 s[94:95], s[0:1], 48")
    a("s_load_dwordx2 s[96:97], s[0:1], 16")
    a("s_mov_b32 s93, 401408")
    a(f"v_and_b32 v{V_LANE}, 63, v0")
    a(f"v_lshrrev_b32 v{V_X}, 6, v0")
    a(f"v_lshlrev_b32 v{V_L16}, 4, v{V_LANE}")
    a(f"v_readfirstlane_b32 s{S_W}, v{V_X}")
    a(f"s_and_b32 s{S_T0}, s2, 7")
    a(f"s_lshr_b32 s{S_T1}, s2, 3")
    a(f"s_and_b32 s{S_T}, s{S_T0}, 1")
    a(f"s_lshl_b32 s{S_T}, s{S_T}, 3")
    a(f"s_and_b32 s{S_T2}, s{S_T1}, 7")
    a(f"s_add_u32 s{S_T}, s{S_T}, s{S_T2}")
    a(f"s_lshr_b32 s{S_G}, s{S_T0}, 1")
    a(f"s_lshl_b32 s{S_G}, s{S_G}, 2")
    a(f"s_lshr_b32 s{S_T2}, s{S_T1}, 3")
    a(f"s_add_u32 s{S_G}, s{S_G}, s{S_T2}")
    a(f"s_mul_i32 s{S_5G}, s{S_G}, 5")
    S_RHO = 24
    a(f"s_lshr_b32 s{S_T0}, s{S_G}, 1")
    a(f"s_mul_i32 s{S_T1}, s{S_T0}, 3")
    a(f"s_add_u32 s{S_T1}, s{S_T1}, 56")
    a(f"s_mul_i32 s{S_T2}, s{S_T0}, 7")
    a(f"s_and_b32 s{S_T3}, s{S_G}, 1")
    a(f"s_cmp_eq_u32 s{S_T3}, 0")
    a(f"s_cselect_b32 s{S_T0}, 0, 2")
    a(f"s_add_u32 s{S_RHO}, s{S_T1}, s{S_T0}")
    a(f"s_add_u32 s{S_T1}, s{S_T1}, 1")
    a(f"s_add_u32 s{S_T0}, s{S_T2}, 3")
    a(f"s_cmp_eq_u32 s{S_T3}, 0")
    a(f"s_cselect_b32 s{S_RHO+1}, s{S_T1}, s{S_T0}")
    a(f"s_cselect_b32 s{S_T0}, 0, 4")
    a(f"s_add_u32 s{S_RHO+2}, s{S_T2}, s{S_T0}")
    a(f"s_add_u32 s{S_RHO+3}, s{S_RHO+2}, 1")
    a(f"s_add_u32 s{S_RHO+4}, s{S_RHO+2}, 2")
    a(f"s_and_b32 s{S_TM}, s{S_W}, 3")
    a(f"s_lshr_b32 s{S_TN}, s{S_W}, 2")
    a(f"s_and_b32 s{S_SUB}, s{S_W}, 1")
    a(f"s_lshr_b32 s{S_BLK}, s{S_W}, 1")
    S_WR = 31 + 55
    a(f"s_and_b32 s{S_WR}, s{S_G}, {3 if ROT else 0}")
    a(f"s_lshl_b32 s{S_WR}, s{S_WR}, 1")
    a(f"s_add_u32 s{S_WR}, s{S_WR}, s{S_W}")
    a(f"s_and_b32 s{S_WR}, s{S_WR}, 7")
    a(f"s_lshl_b32 s{S_TOK}, s{S_T}, 2")
    a(f"s_add_u32 s{S_TOK}, s{S_TOK}, s{S_TM}")
    a(f"s_mov_b32 s{S_MHI}, 0")
    a(f"s_mov_b32 s{S_MHI+1}, -1")
    R, C, MH, H, MG, X0, X1, X2, TQ, TG, VQ, VG = [V_X + i for i in range(12)]
    a(f"v_bfe_u32 v{R}, v{V_LANE}, 2, 2")
    a(f"v_and_b32 v{C}, 3, v{V_LANE}")
    a(f"v_bfe_u32 v{MH}, v{V_LANE}, 4, 1")
    a(f"v_lshrrev_b32 v{H}, 5, v{V_LANE}")
    a(f"v_lshl_add_u32 v{MG}, v{MH}, 2, v{C}")
    a(f"v_and_b32 v{X0}, 1, v{MG}")
    a(f"v_lshlrev_b32 v{X0}, 2, v{X0}")
    a(f"v_lshrrev_b32 v{X1}, 1, v{MG}")
    a(f"v_or_b32 v{X0}, v{X0}, v{X1}")
    a(f"v_min_u32 v{X0}, 6, v{X0}")
    a(f"s_mul_i32 s{S_T0}, s{S_TN}, 56")
    a(f"v_lshlrev_b32 v{X0}, 3, v{X0}")
    a(f"v_add_u32 v{X0}, s{S_T0}, v{X0}")
    a(f"v_lshrrev_b32 v{X1}, 4, v{X0}")
    a(f"v_bfe_u32 v{X2}, v{R}, 1, 1")
    a(f"v_lshlrev_b32 v{X2}, 2, v{X2}")
    a(f"v_xor_b32 v{X1}, v{X1}, v{X2}")
    a(f"v_and_b32 v{X0}, 15, v{X0}")
    a(f"v_lshl_add_u32 v{X0}, v{X1}, 4, v{X0}")
    a(f"v_lshl_add_u32 v{X2}, v{H}, 3, v{R}")
    a(f"v_lshl_add_u32 v{TQ}, v{X2}, 7, v{X0}")
    a(f"s_lshl_b32 s{S_T0}, s{S_TN}, 1")
    a(f"v_and_b32 v{X0}, 1, v{C}")
    a(f"v_add_u32 v{X0}, s{S_T0}, v{X0}")
    a(f"v_lshlrev_b32 v{X1}, 1, v{MH}")
    a(f"v_xor_b32 v{X0}, v{X0}, v{X1}")
    a(f"v_lshlrev_b32 v{X0}, 4, v{X0}")
    a(f"v_lshrrev_b32 v{X1}, 1, v{C}")
    a(f"v_lshl_add_u32 v{X0}, v{X1}, 3, v{X0}")
    a(f"v_lshl_add_u32 v{X0}, v{X2}, 6, v{X0}")
    a(f"v_lshl_add_u32 v{TG}, v{MH}, 10, v{X0}")
    a(f"v_lshrrev_b32 v{X0}, 3, v{V_LANE}")
    a(f"v_and_b32 v{X1}, 7, v{V_LANE}")
    a(f"v_bfe_u32 v{X2}, v{V_LANE}, 4, 1")
    a(f"v_lshlrev_b32 v{X2}, 2, v{X2}")
    a(f"v_xor_b32 v{X1}, v{X1}, v{X2}")
    a(f"v_lshlrev_b32 v{X1}, 4, v{X1}")
    a(f"s_movk_i32 s{S_T0}, 2688")
    a(f"v_mad_u32_u24 v{VQ}, v{X0}, s{S_T0}, v{X1}")
    a(f"v_lshrrev_b32 v{X0}, 2, v{V_LANE}")
    a(f"v_lshlrev_b32 v{X1}, 4, v{C}")
    a(f"s_movk_i32 s{S_T0}, 3584")
    a(f"v_mad_u32_u24 v{VG}, v{X0}, s{S_T0}, v{X1}")
    a(f"s_lshl_b32 s{S_T0}, s{S_SUB}, 5")
    a(f"v_xor_b32 v{VG}, s{S_T0}, v{VG}")
    V_XG, V_XW, V_XR = 20, 21, 22
    a(f"v_lshrrev_b32 v{X0}, 2, v{V_LANE}")
    a(f"s_movk_i32 s{S_T0}, 896")
    a(f"v_lshlrev_b32 v{X1}, 4, v{C}")
    a(f"v_mad_u32_u24 v{V_XG}, v{X0}, s{S_T0}, v{X1}")
    a(f"s_and_b32 s{S_T1}, s{S_WR}, 1")
    a(f"s_lshl_b32 s{S_T1}, s{S_T1}, 4")
    a(f"v_add_u32 v{X0}, s{S_T1}, v{X0}")
    a(f"s_movk_i32 s{S_T0}, 464")
    a(f"v_mad_u32_u24 v{V_XW}, v{X0}, s{S_T0}, v{X1}")
    a(f"s_lshr_b32 s{S_T1}, s{S_WR}, 1")
    a(f"s_lshl_b32 s{S_T1}, s{S_T1}, 15")
    a(f"s_add_u32 s{S_T1}, s{S_T1}, 16384")
    a(f"v_add_u32 v{V_XW}, s{S_T1}, v{V_XW}")
    a(f"v_and_b32 v{X0}, 31, v{V_LANE}")
    a(f"v_lshlrev_b32 v{X1}, 4, v{H}")
    a(f"v_mad_u32_u24 v{V_XR}, v{X0}, s{S_T0}, v{X1}")
    a(f"s_lshl_b32 s{S_T1}, s{S_TM}, 15")
    a(f"s_add_u32 s{S_T1}, s{S_T1}, 16384")
    a(f"v_add_u32 v{V_XR}, s{S_T1}, v{V_XR}")
    a(f"s_lshl_b32 s{S_M0}, s{S_W}, 10")
    a("s_waitcnt lgkmcnt(0)")
    st()
    srd(a, SRD_X, 16, 1835008)
    srd(a, SRD_WS, 10, WS_SIZE)
    SRD_DBG = 80
    if FUSED:
        a("s_load_dwordx2 s[80:81], s[0:1], 64")
        a("s_mov_b32 s82, 256")
        a("s_mov_b32 s83, 0x00020000")
        a("s_waitcnt lgkmcnt(0)")
    a("s_cmp_lg_u32 s2, 0")
    a("s_cbranch_scc1 K1_NOZ")
    a(f"s_cmp_lg_u32 s{S_W}, 0")
    a("s_cbranch_scc1 K1_NOZ")
    a(f"v_lshlrev_b32 v{X0}, 7, v{V_LANE}")
    a(f"v_mov_b32 v{X1}, 0")
    a(f"s_mov_b32 s{S_T0}, 0xF00000")
    a(f"buffer_store_dword v{X1}, v{X0}, s[{SRD_WS}:{SRD_WS+3}], s{S_T0} offen sc0 sc1")
    if FUSED:
        a(f"s_mov_b32 s{S_T0}, 0xF02000")
        a(f"buffer_store_dword v{X1}, v{X0}, s[{SRD_WS}:{SRD_WS+3}], s{S_T0} offen sc0 sc1")
        a("s_waitcnt vmcnt(0)")
        a(f"v_mov_b32 v{X0}, 0")
        a(f"v_mov_b32 v{X1}, 1")
        a("s_mov_b64 exec, 1")
        a(f"buffer_store_dword v{X1}, v{X0}, s[{SRD_DBG}:{SRD_DBG+3}], 0 offen sc0 sc1")
        a("s_mov_b64 exec, -1")
    a.label("K1_NOZ")
    if TOUCH:
        SRD_TMP = 84
        a(f"s_cmp_ge_u32 s{S_W}, 5")
        a("s_cbranch_scc1 K1_TX")
        a(f"v_min_u32 v{X0}, 55, v{V_LANE}")
        a(f"s_and_b32 s{S_T0}, s{S_T}, 7")
        a(f"s_mul_i32 s{S_T0}, s{S_T0}, 56")
        a(f"v_add_u32 v{X0}, s{S_T0}, v{X0}")
        a(f"s_add_u32 s{S_T1}, s{S_5G}, s{S_W}")
        a(f"s_cmp_lt_u32 s{S_T1}, 56")
        a("s_cbranch_scc0 K1_TQ")
        a(f"s_movk_i32 s{S_T2}, 3584")
        a(f"v_mul_u32_u24 v{X0}, s{S_T2}, v{X0}")
        a(f"s_lshl_b32 s{S_T1}, s{S_T1}, 6")
        srd(a, SRD_TMP, 12, 1605632)
        a(f"buffer_load_dword v{X1}, v{X0}, s[{SRD_TMP}:{SRD_TMP+3}], s{S_T1} offen")
        a(f"s_mov_b32 s{SRD_TMP}, s14")
        a(f"s_mov_b32 s{SRD_TMP+1}, s15")
        a(f"buffer_load_dword v{X2}, v{X0}, s[{SRD_TMP}:{SRD_TMP+3}], s{S_T1} offen")
        a("s_branch K1_TX")
        a.label("K1_TQ")
        a(f"s_movk_i32 s{S_T2}, 2688")
        a(f"v_mul_u32_u24 v{X0}, s{S_T2}, v{X0}")
        a(f"s_sub_u32 s{S_T1}, s{S_T1}, 56")
        a(f"s_mul_i32 s{S_T1}, s{S_T1}, 112")
        srd(a, SRD_TMP, 8, 1204224)
        a(f"buffer_load_dword v{X1}, v{X0}, s[{SRD_TMP}:{SRD_TMP+3}], s{S_T1} offen")
        a(f"buffer_load_dword v{X2}, v{X0}, s[{SRD_TMP}:{SRD_TMP+3}], s{S_T1} offen offset:108")
        a.label("K1_TX")
    XR = V_XN
    a(f"s_lshl_b32 s{S_T0}, s{S_WR}, 4")
    a(f"s_lshl_b32 s{S_T1}, s{S_T}, 7")
    a(f"s_add_u32 s{S_T1}, s{S_T1}, s{S_T0}")
    a(f"s_mul_i32 s{S_T1}, s{S_T1}, 896")
    for i in range(14):
        a(f"buffer_load_dwordx4 {vr(XR+4*i,4)}, v{V_XG}, s[{SRD_X}:{SRD_X+3}], s{S_T1} offen offset:{64*i}")
    a(f"s_cmp_eq_u32 s{S_SUB}, 1")
    a("s_cselect_b64 s[18:19], s[14:15], s[12:13]")
    a(f"s_mul_i32 s{S_T2}, s{S_BLK}, 57344")
    a(f"s_mul_i32 s{S_T3}, s{S_BLK}, 43008")
    a(f"s_mul_i32 s{S_T0}, s{S_SUB}, 21504")
    a(f"s_add_u32 s{S_T3}, s{S_T3}, s{S_T0}")
    a("s_mov_b32 s30, 1204224")
    a("s_mov_b32 s31, 172032")
    a("s_mov_b32 s29, 512")
    for j in range(5):
        sj = SRD_J + 4 * j
        a(f"s_mov_b32 s{S_T0}, s{S_RHO+j}")
        a(f"s_lshl_b32 s{S_T1}, s{S_T0}, 6")
        a(f"s_add_u32 s{S_T1}, s{S_T1}, s{S_T2}")
        a(f"s_sub_u32 s{S_STO}, s{S_T0}, 56")
        a(f"s_mul_i32 s{S_STO}, s{S_STO}, 112")
        a(f"s_add_u32 s{S_STO}, s{S_STO}, s{S_T3}")
        a(f"s_cmp_lt_u32 s{S_T0}, 56")
        a(f"s_cselect_b64 s[{sj}:{sj+1}], s[18:19], s[8:9]")
        a(f"s_cselect_b32 s{sj+2}, 1605632, s30")
        a(f"s_mov_b32 s{sj+3}, 0x00020000")
        a(f"s_cselect_b32 s{S_SO+j}, s{S_T1}, s{S_STO}")
        a(f"s_cselect_b32 s{S_INC+j}, 229376, s31")
        a(f"s_cselect_b64 s[{S_M}:{S_M+1}], -1, 0")
        a(f"v_cndmask_b32 v{V_VOFF+j}, v{VQ}, v{VG}, s[{S_M}:{S_M+1}]")
        a(f"v_cndmask_b32 v{V_TR+2*j}, v{TQ}, v{TG}, s[{S_M}:{S_M+1}]")
        a(f"s_cselect_b32 s{S_T1}, 256, s29")
        a(f"v_add_u32 v{V_TR+2*j}, {j*32768}, v{V_TR+2*j}")
        a(f"v_add_u32 v{V_TR+2*j+1}, s{S_T1}, v{V_TR+2*j}")
    SRD_PF, S_PF = 88, 92
    a("s_lshr_b32 s92, s2, 3")
    a("s_lshl_b32 s92, s92, 3")
    a(f"s_add_u32 s92, s92, s{S_W}")
    a("s_cmp_lt_u32 s92, 196")
    a("s_cselect_b64 s[88:89], s[94:95], s[96:97]")
    a("s_cselect_b32 s90, 1605632, s93")
    a("s_mov_b32 s91, 0x00020000")
    a("s_cselect_b32 s93, 0, 196")
    a("s_sub_u32 s92, s92, s93")
    a("s_lshl_b32 s92, s92, 13")
    a("s_barrier")

    def dma_group(g, js=range(5)):
        slot = g % 4
        for j in js:
            sj = SRD_J + 4 * j
            a(f"s_add_u32 m0, s{S_M0}, {j*32768 + slot*8192}")
            a("s_nop 0")
            a(f"buffer_load_dwordx4 v{V_VOFF+j}, s[{sj}:{sj+3}], s{S_SO+j} offen lds")
            a(f"s_add_u32 s{S_SO+j}, s{S_SO+j}, s{S_INC+j}")
    dma_group(0, (0, 1)); dma_group(1, (0, 1)); dma_group(0, (2, 3, 4)); dma_group(1, (2, 3, 4))
    a("s_waitcnt vmcnt(23)")
    st()
    SUM = [V_X + 0, V_X + 1]; SQ = [V_X + 2, V_X + 3]
    for r in SUM + SQ: a(f"v_mov_b32 v{r}, 0")
    a(f"s_mov_b32 s{S_T0}, 0x3f803f80")
    for i in range(56):
        a(f"v_dot2_f32_bf16 v{SUM[i&1]}, v{XR+i}, s{S_T0}, v{SUM[i&1]}")
        a(f"v_dot2_f32_bf16 v{SQ[i&1]}, v{XR+i}, v{XR+i}, v{SQ[i&1]}")
        if i % 4 == 3 and i < 55: a(f"s_waitcnt vmcnt({10 + 12 - i//4})")
    a(f"v_add_f32 v{SUM[0]}, v{SUM[0]}, v{SUM[1]}")
    a(f"v_add_f32 v{SQ[0]}, v{SQ[0]}, v{SQ[1]}")
    for perm in ("[1,0,3,2]", "[2,3,0,1]"):
        a(f"v_add_f32_dpp v{SUM[0]}, v{SUM[0]}, v{SUM[0]} quad_perm:{perm} row_mask:0xf bank_mask:0xf")
        a(f"v_add_f32_dpp v{SQ[0]}, v{SQ[0]}, v{SQ[0]} quad_perm:{perm} row_mask:0xf bank_mask:0xf")
    M, VAR, RR, CC = V_X + 4, V_X + 5, V_X + 6, V_X + 7
    a(f"v_mul_f32 v{M}, 0x3b124925, v{SUM[0]}")
    a(f"v_mul_f32 v{VAR}, 0x3b124925, v{SQ[0]}")
    a(f"v_fma_f32 v{VAR}, -v{M}, v{M}, v{VAR}")
    a(f"v_max_f32 v{VAR}, 0, v{VAR}")
    def rbf(r):
        a(f"v_cvt_pk_bf16_f32 v{r}, v{r}, v{r}")
        a(f"v_lshlrev_b32 v{r}, 16, v{r}")
    rbf(M); rbf(VAR)
    a(f"v_add_f32 v{VAR}, 0x3727c5ac, v{VAR}")
    rbf(VAR)
    a(f"v_sqrt_f32 v{VAR}, v{VAR}")
    rbf(VAR)
    a(f"v_rcp_f32 v{RR}, v{VAR}")
    a(f"v_mul_f32 v{CC}, v{M}, v{RR}")
    a(f"v_sub_f32 v{CC}, 0, v{CC}")
    XO = V_XN + 56
    TU = V_ACC
    for i0 in range(0, 56, 8):
        for i in range(8): a(f"v_lshlrev_b32 v{TU+2*i}, 16, v{XR+i0+i}")
        for i in range(8): a(f"v_and_b32 v{TU+2*i+1}, 0xffff0000, v{XR+i0+i}")
        for i in range(16): a(f"v_fma_f32 v{TU+i}, v{TU+i}, v{RR}, v{CC}")
        for i in range(8): a(f"v_cvt_pk_bf16_f32 v{XO+i0+i}, v{TU+2*i}, v{TU+2*i+1}")
        if i0 == 24:
            for ii in range(7):
                a(f"ds_write_b128 v{V_XW}, {vr(XO+4*ii,4)} offset:{64*ii}")
    st()
    a("s_waitcnt lgkmcnt(0)")
    a("s_barrier")
    for s_ in range(14):
        a(f"ds_read_b128 {vr(V_XN+4*s_,4)}, v{V_XR} offset:{32*s_}")
    a("s_waitcnt lgkmcnt(0)")
    a("s_barrier")
    for i in range(7):
        a(f"ds_write_b128 v{V_XW}, {vr(XO+4*(7+i),4)} offset:{64*i}")
    a("s_waitcnt lgkmcnt(0)")
    a("s_barrier")
    for s_ in range(14):
        a(f"ds_read_b128 {vr(V_XN+4*(14+s_),4)}, v{V_XR} offset:{32*s_}")
    a("s_waitcnt lgkmcnt(0) vmcnt(0)")
    st()
    a("s_barrier")
    st()
    dma_group(2, (0, 1)); dma_group(3, (0, 1)); dma_group(2, (2, 3, 4)); dma_group(3, (2, 3, 4))

    steps = [(s_, j) for s_ in range(28) for j in (0, 1)] + [(s_, j) for s_ in range(28) for j in (2, 3, 4)]
    NST = len(steps)
    def stage_of(n):
        return (n // 8) if n < 56 else 7 + (n - 56) // 12
    def tr_reads(m):
        s, j = steps[m]
        g, b = s // 4, s % 4
        off = (g % 4) * 8192 + b * 2048
        w = V_WF + 4 * (m % 4)
        a(f"ds_read_b64_tr_b16 {vr(w,2)}, v{V_TR+2*j} offset:{off}")
        a(f"ds_read_b64_tr_b16 {vr(w+2,2)}, v{V_TR+2*j+1} offset:{off}")
    def epilogue_tile(j):
        A = V_ACC + 16 * j
        T = V_T
        o = []
        a(f"s_mov_b32 s{S_T0}, s{S_RHO+j}")
        a(f"s_cmp_lt_u32 s{S_T0}, 56")
        a(f"s_cbranch_scc1 K1_EGU{j}")
        a(f"s_sub_u32 s{S_T0}, s{S_T0}, 56")
        a(f"s_lshl_b32 s{S_T0}, s{S_T0}, 1")
        a(f"s_add_u32 s{S_T0}, s{S_T0}, s{S_TN}")
        a(f"s_cmp_ge_u32 s{S_T0}, 32")
        a(f"s_cselect_b32 s{S_T1}, 0x3f80, 0")
        a(f"v_mov_b32 v{V_PAD}, s{S_T1}")
        a(f"s_lshl_b32 s{S_T0}, s{S_T0}, 6")
        a(f"s_add_u32 s{S_T0}, s{S_T0}, s{S_TOK}")
        a(f"s_lshl_b32 s{S_STO}, s{S_T0}, 11")
        a("s_nop 4")
        for e in range(8):
            a(f"v_cvt_pk_bf16_f32 v{T+e}, v{A+2*e}, v{A+2*e+1}")
        a(f"v_cndmask_b32 v{T+6}, v{T+6}, v{V_PAD}, s[{S_MHI}:{S_MHI+1}]")
        a(f"v_cndmask_b32 v{T+7}, v{T+7}, 0, s[{S_MHI}:{S_MHI+1}]")
        a(f"buffer_store_dwordx4 {vr(T,4)}, v{V_L16}, s[{SRD_WS}:{SRD_WS+3}], s{S_STO} offen{STF}")
        a(f"buffer_store_dwordx4 {vr(T+4,4)}, v{V_L16}, s[{SRD_WS}:{SRD_WS+3}], s{S_STO} offen offset:1024{STF}")
        a(f"s_branch K1_EJ{j}")
        a.label(f"K1_EGU{j}")
        a(f"s_lshl_b32 s{S_T0}, s{S_T0}, 1")
        a(f"s_add_u32 s{S_T0}, s{S_T0}, s{S_TN}")
        a(f"s_mul_i32 s{S_T1}, s{S_TOK}, 112")
        a(f"s_add_u32 s{S_T0}, s{S_T0}, s{S_T1}")
        a(f"s_lshl_b32 s{S_STO}, s{S_T0}, 10")
        a(f"s_add_u32 s{S_STO}, s{S_STO}, {WS_H}")
        a("s_nop 6")
        for e in range(8):
            a(f"v_mul_f32 v{A+e}, v{A+e}, v{A+8+e}")
        for e in range(4):
            a(f"v_cvt_pk_bf16_f32 v{T+e}, v{A+2*e}, v{A+2*e+1}")
        a(f"buffer_store_dwordx4 {vr(T,4)}, v{V_L16}, s[{SRD_WS}:{SRD_WS+3}], s{S_STO} offen{STF}")
        a(f"buffer_store_dwordx4 {vr(T,4)}, v{V_L16}, s[{SRD_WS}:{SRD_WS+3}], s{S_STO} offen{STF}")
        a.label(f"K1_EJ{j}")
    def signal(off, tag):
        a(f"s_cmp_lg_u32 s{S_W}, 0")
        a(f"s_cbranch_scc1 K1_SG{tag}")
        a.label(f"K1_INITP{tag}")
        a(f"v_mov_b32 v{V_X+1}, 0")
        a(f"buffer_load_dword v{V_X}, v{V_X+1}, s[{SRD_DBG}:{SRD_DBG+3}], 0 offen sc0 sc1")
        a("s_waitcnt vmcnt(0)")
        a(f"v_readfirstlane_b32 s{S_T0}, v{V_X}")
        a(f"s_cmp_lg_u32 s{S_T0}, 0")
        a(f"s_cbranch_scc1 K1_INITOK{tag}")
        a("s_sleep 8")
        a(f"s_branch K1_INITP{tag}")
        a.label(f"K1_INITOK{tag}")
        a(f"s_lshl_b32 s{S_T0}, s{S_T}, 7")
        a(f"s_add_u32 s{S_T0}, s{S_T0}, {off}")
        a(f"v_mov_b32 v{V_X}, 1")
        a("s_mov_b64 exec, 1")
        a(f"buffer_atomic_add v{V_X}, v{V_X+1}, s[{SRD_WS}:{SRD_WS+3}], s{S_T0} offen sc1")
        a("s_mov_b64 exec, -1")
        a.label(f"K1_SG{tag}")
    vm = [("A", 2)] * 2 + [("A", 3)] * 2 + [("B", 2)] * 3 + [("B", 3)] * 3
    npf = [0]
    def prefetch(k):
        for _ in range(k):
            i = npf[0]
            if i >= 8: return
            npf[0] += 1
            a(f"s_add_u32 s{S_T0}, s{S_PF}, {i*1024}")
            a(f"buffer_load_dwordx4 {vr(V_PFD + 4*(i&1),4)}, v{V_L16}, s[{SRD_PF}:{SRD_PF+3}], s{S_T0} offen")
            vm.append(("P", i))
    def wait_tag(t):
        if t in vm:
            idx = max(i for i, x in enumerate(vm) if x == t)
            a(f"s_waitcnt vmcnt({len(vm)-1-idx})")
    issued = [0]
    limit = [15]
    def fill(n):
        while issued[0] <= min(n + PF, limit[0], NST - 1):
            tr_reads(issued[0]); issued[0] += 1
    def stage_start(i):
        return 8 * i if i < 7 else 56 + 12 * (i - 7)
    def stage_last(i):
        return stage_start(i + 1) - 1 if i < 13 else NST - 1
    for n in range(NST):
        i = stage_of(n)
        if n == stage_start(i) and n > 0:
            def tag(i_): return ("A", i_) if i_ < 7 else ("B", i_ - 7)
            want = i + 1 if (i + 1 <= 13 and i != 1) else i
            wait_tag(tag(want))
            if i == SIGST:
                wait_tag(("S", 0))
            if i == 13 and FUSED and KVPF:
                a(f"s_cmp_lg_u32 s{S_W}, 0")
                a("s_cbranch_scc1 K1_KVW")
                a(f"s_lshr_b32 s{S_T1}, s2, 4")
                a(f"v_min_u32 v{V_X+1}, 2, v{V_LANE}")
                a(f"v_sub_u32 v{V_X+1}, s{S_T1}, v{V_X+1}")
                a(f"v_max_i32 v{V_X+1}, 0, v{V_X+1}")
                a(f"v_lshlrev_b32 v{V_X+1}, 7, v{V_X+1}")
                a(f"s_mov_b32 s{S_T0}, 0xF02800")
                a.label("K1_KVP")
                a(f"buffer_load_dword v{V_X}, v{V_X+1}, s[{SRD_WS}:{SRD_WS+3}], s{S_T0} offen sc0 sc1")
                a("s_waitcnt vmcnt(0)")
                a(f"v_cmp_gt_u32 vcc, 16, v{V_X}")
                a("s_nop 1")
                a("s_cmp_eq_u64 vcc, 0")
                a("s_cbranch_scc1 K1_KVW")
                a("s_sleep 4")
                a("s_branch K1_KVP")
                a.label("K1_KVW")
            a("s_barrier")
            st()
            limit[0] = max(limit[0], stage_last(want))
            if i == SIGST and FUSED: signal(0xF02800, "q")
            if i == 13 and FUSED and KVPF:
                a(f"s_cmp_ge_u32 s{S_W}, 4")
                a("s_cbranch_scc1 K1_KVD")
                VV = V_X + 2
                a(f"v_and_b32 v{V_X}, 1, v{V_LANE}")
                a(f"v_lshlrev_b32 v{V_X}, 10, v{V_X}")
                a(f"v_bfe_u32 v{V_X+1}, v{V_LANE}, 1, 1")
                a(f"v_lshl_add_u32 v{V_X}, v{V_X+1}, 9, v{V_X}")
                a(f"v_lshrrev_b32 v{V_X+1}, 2, v{V_LANE}")
                a(f"v_lshl_add_u32 v{VV}, v{V_X+1}, 4, v{V_X}")
                for u in range(3):
                    a(f"s_lshr_b32 s{S_T0}, s2, 4")
                    a(f"s_lshl_b32 s{S_T0}, s{S_T0}, 2")
                    a(f"s_add_u32 s{S_T0}, s{S_T0}, s{S_W}")
                    a(f"s_add_i32 s{S_T0}, s{S_T0}, {4*u - 8}")
                    a(f"s_max_i32 s{S_T0}, s{S_T0}, 0")
                    a(f"s_and_b32 s{S_T1}, s2, 15")
                    a(f"s_lshl_b32 s{S_T1}, s{S_T1}, 6")
                    a(f"s_add_u32 s{S_T0}, s{S_T0}, s{S_T1}")
                    a(f"s_lshl_b32 s{S_T0}, s{S_T0}, 11")
                    a(f"s_add_u32 s{S_T1}, s{S_T0}, {16*64*2048}")
                    a(f"s_add_u32 s{S_T2}, s{S_T0}, {32*64*2048}")
                    a(f"s_lshl_b32 s{S_T3}, s{S_W}, 12")
                    a(f"s_add_u32 s{S_T3}, s{S_T3}, {u*16384}")
                    a(f"s_mov_b32 m0, s{S_T3}")
                    a("s_nop 0")
                    a(f"buffer_load_dwordx4 v{V_L16}, s[{SRD_WS}:{SRD_WS+3}], s{S_T1} offen sc0 sc1 lds")
                    a(f"buffer_load_dwordx4 v{V_L16}, s[{SRD_WS}:{SRD_WS+3}], s{S_T1} offen offset:1024 sc0 sc1 lds")
                    a(f"s_add_u32 m0, s{S_T3}, 2048")
                    a("s_nop 0")
                    a(f"buffer_load_dwordx4 v{VV}, s[{SRD_WS}:{SRD_WS+3}], s{S_T2} offen sc0 sc1 lds")
                    a(f"s_add_u32 m0, s{S_T3}, 3072")
                    a(f"s_add_u32 s{S_T2}, s{S_T2}, 256")
                    a(f"buffer_load_dwordx4 v{VV}, s[{SRD_WS}:{SRD_WS+3}], s{S_T2} offen sc0 sc1 lds")
                a.label("K1_KVD")
            if i < 7:
                if i + 3 <= 6:
                    dma_group(i + 3, (0, 1)); vm += [("A", i + 3)] * 2
            else:
                gb = i - 7
                if gb >= 1 and gb + 3 <= 6:
                    dma_group(gb + 3, (2, 3, 4)); vm += [("B", gb + 3)] * 3
            if PFW and i >= 8: prefetch(2)
        if n == 56 + 6:
            epilogue_tile(0); epilogue_tile(1)
            vm += [("S", 0)] * 4
        fill(n)
        a(f"s_waitcnt lgkmcnt({2*(issued[0]-1-n)})")
        s_, j = steps[n]
        acc = vr(V_ACC + 16 * j, 16)
        a(f"v_mfma_f32_32x32x16_bf16 {acc}, {vr(V_WF+4*(n%4),4)}, {vr(V_XN+4*s_,4)}, {'0' if s_ == 0 else acc}")
    if PFW: a("s_waitcnt vmcnt(0)")
    st()
    for j in (2, 3, 4): epilogue_tile(j)
    if RT:
        a("s_waitcnt vmcnt(0)")
        a("s_memrealtime s[100:101]")
        a("s_waitcnt lgkmcnt(0)")
        a(f"s_cmp_lg_u32 s{S_W}, 0")
        a("s_cbranch_scc1 K1_END")
        a("v_mov_b32 v240, s98")
        a("v_mov_b32 v241, s100")
        a("s_lshl_b32 s15, s2, 3")
        a("s_add_u32 s15, s15, 0x4000000")
        a("v_mov_b32 v242, 0")
        a(f"buffer_store_dwordx2 v[240:241], v242, s[{SRD_WS}:{SRD_WS+3}], s15 offen")
    if STAMP:
        a("s_waitcnt vmcnt(0)")
        st()
        st.dump(37, S_W, 240, 241, "k1")
    if FUSED:
        a("s_waitcnt vmcnt(0)")
        a("s_barrier")
        signal(0xF02000, "h")
        return
    a.label("K1_END")
    a("s_endpgm")

if __name__ == "__main__":
    build([("k1_kernel", gen_k1, 256, 512, 163840, 252, 102)], "k1.s")
    STAMP = True
    build([("k1_kernel", gen_k1, 256, 512, 163840, 256, 102)], "k1st.s")
```

```python
from asmlib import Asm
from gen import vr, sr, srd, kernel_desc, HEADER, build, NAME, WS_QKV, WS_H, WS_O, WS_SIZE
import gen2
FUSED = False
from gen2 import Stamper
import struct

STAMP = False
LDS_A = 0
LDS_G = 65536
LDS_SYNC = 131072
WS_CNT = 0xF00000
HB = 12
WL = 6

def SC(): return ' sc0 sc1' if FUSED else ''

def tile_common(a, V_X, V_LANE, V_TR, V_WV, S_T0, lds_base_sreg):
    R, C, MH, H, MG, X0, X1, X2 = [V_X + i for i in range(8)]
    a(f"v_bfe_u32 v{R}, v{V_LANE}, 2, 2")
    a(f"v_and_b32 v{C}, 3, v{V_LANE}")
    a(f"v_bfe_u32 v{MH}, v{V_LANE}, 4, 1")
    a(f"v_lshrrev_b32 v{H}, 5, v{V_LANE}")
    a(f"v_lshl_add_u32 v{MG}, v{MH}, 2, v{C}")
    a(f"v_and_b32 v{X0}, 1, v{MG}")
    a(f"v_lshlrev_b32 v{X0}, 2, v{X0}")
    a(f"v_lshrrev_b32 v{X1}, 1, v{MG}")
    a(f"v_or_b32 v{X0}, v{X0}, v{X1}")
    a(f"v_lshlrev_b32 v{X0}, 3, v{X0}")
    a(f"v_bfe_u32 v{X2}, v{R}, 1, 1")
    a(f"v_lshlrev_b32 v{X2}, 6, v{X2}")
    a(f"v_xor_b32 v{X0}, v{X0}, v{X2}")
    a(f"v_lshl_add_u32 v{X1}, v{H}, 3, v{R}")
    a(f"v_lshl_add_u32 v{X0}, v{X1}, 7, v{X0}")
    a(f"v_add_u32 v{V_TR}, s{lds_base_sreg}, v{X0}")
    a(f"v_add_u32 v{V_TR+1}, 512, v{V_TR}")
    a(f"v_xor_b32 v{V_TR+2}, 64, v{V_TR}")
    a(f"v_xor_b32 v{V_TR+3}, 64, v{V_TR+1}")
    a(f"v_lshrrev_b32 v{X0}, 3, v{V_LANE}")
    a(f"v_and_b32 v{X1}, 7, v{V_LANE}")
    a(f"v_bfe_u32 v{X2}, v{V_LANE}, 4, 1")
    a(f"v_lshlrev_b32 v{X2}, 2, v{X2}")
    a(f"v_xor_b32 v{X1}, v{X1}, v{X2}")
    a(f"v_lshlrev_b32 v{X1}, 4, v{X1}")
    a(f"s_movk_i32 s{S_T0}, 896")
    a(f"v_mad_u32_u24 v{V_WV}, v{X0}, s{S_T0}, v{X1}")

def attention(a, st):
    V_LANE, V_L16, V_VV, V_TRV, V_T = 1, 2, 3, 4, 5
    V_X = 6
    V_Q = 16; V_KF = 24; V_VF = 40; V_O = 56; V_P = 72; V_S = 96
    S_W, S_HD, S_T4, S_QB = 3, 33, 34, 35
    S_T0, S_T1, S_T2, S_T3 = 36, 37, 38, 39
    S_MHI = 40
    S_TB, S_FB = 52, 53
    SRD_WS = 4
    a(f"s_and_b32 s{S_HD}, s2, 15")
    a(f"s_lshr_b32 s{S_T4}, s2, 4")
    a(f"s_lshl_b32 s{S_QB}, s{S_T4}, 2")
    a(f"s_add_u32 s{S_QB}, s{S_QB}, s{S_W}")
    a(f"s_mov_b32 s{S_MHI}, 0")
    a(f"s_mov_b32 s{S_MHI+1}, -1")
    R, C, MH, H, X0, X1 = [V_X + i for i in range(6)]
    a(f"v_bfe_u32 v{R}, v{V_LANE}, 2, 2")
    a(f"v_and_b32 v{C}, 3, v{V_LANE}")
    a(f"v_bfe_u32 v{MH}, v{V_LANE}, 4, 1")
    a(f"v_lshrrev_b32 v{H}, 5, v{V_LANE}")
    a(f"v_and_b32 v{X0}, 1, v{C}")
    a(f"v_lshlrev_b32 v{X0}, 10, v{X0}")
    a(f"v_lshrrev_b32 v{X1}, 1, v{C}")
    a(f"v_lshl_add_u32 v{X0}, v{X1}, 9, v{X0}")
    a(f"v_lshrrev_b32 v{X1}, 2, v{V_LANE}")
    a(f"v_lshl_add_u32 v{V_VV}, v{X1}, 4, v{X0}")
    a(f"v_and_b32 v{X0}, 1, v{C}")
    a(f"v_lshlrev_b32 v{X0}, 1, v{X0}")
    a(f"v_lshl_add_u32 v{X0}, v{MH}, 2, v{X0}")
    a(f"v_lshrrev_b32 v{X1}, 1, v{C}")
    a(f"v_add_u32 v{X0}, v{X0}, v{X1}")
    a(f"v_lshlrev_b32 v{X0}, 3, v{X0}")
    a(f"v_lshl_add_u32 v{X1}, v{H}, 2, v{R}")
    a(f"v_lshl_add_u32 v{X0}, v{X1}, 6, v{X0}")
    a(f"s_lshl_b32 s{S_T0}, s{S_W}, 12")
    a(f"s_add_u32 s{S_T1}, s{S_T0}, {2048 + LDS_A}")
    a(f"v_add_u32 v{V_TRV}, s{S_T1}, v{X0}")
    V_KA = 12
    a(f"s_add_u32 s{S_T0}, s{S_T0}, {LDS_A}")
    a(f"v_add_u32 v{V_KA}, s{S_T0}, v{V_L16}")
    a(f"v_and_b32 v{X0}, 31, v{V_LANE}")
    a(f"v_lshlrev_b32 v{X1}, 2, v{H}")
    a(f"v_sub_u32 v{V_T}, v{X0}, v{X1}")
    a("s_waitcnt lgkmcnt(0)")
    srd(a, SRD_WS, 10, WS_SIZE)
    if FUSED:
        a(f"v_mov_b32 v{V_X}, {LDS_SYNC}")
        a(f"s_cmp_lg_u32 s{S_W}, 0")
        a("s_cbranch_scc1 K23_QW")
        a(f"v_min_u32 v{V_X+1}, 2, v{V_LANE}")
        a(f"v_sub_u32 v{V_X+1}, s{S_T4}, v{V_X+1}")
        a(f"v_max_i32 v{V_X+1}, 0, v{V_X+1}")
        a(f"v_lshlrev_b32 v{V_X+1}, 7, v{V_X+1}")
        a(f"s_mov_b32 s{S_T0}, 0xF02800")
        a.label("K23_QP")
        a(f"buffer_load_dword v{V_X+2}, v{V_X+1}, s[{SRD_WS}:{SRD_WS+3}], s{S_T0} offen sc0 sc1")
        a("s_waitcnt vmcnt(0)")
        a(f"v_cmp_gt_u32 vcc, 5, v{V_X+2}")
        a("s_nop 1")
        a("s_cmp_eq_u64 vcc, 0")
        a("s_cbranch_scc1 K23_QOK")
        a("s_sleep 4")
        a("s_branch K23_QP")
        a.label("K23_QOK")
        a(f"v_mov_b32 v{V_X+1}, 1")
        a(f"ds_write_b32 v{V_X}, v{V_X+1} offset:8")
        a("s_branch K23_QGO")
        a.label("K23_QW")
        a(f"ds_read_b32 v{V_X+1}, v{V_X} offset:8")
        a("s_waitcnt lgkmcnt(0)")
        a(f"v_readfirstlane_b32 s{S_T0}, v{V_X+1}")
        a(f"s_cmp_lg_u32 s{S_T0}, 0")
        a("s_cbranch_scc1 K23_QGO")
        a("s_sleep 2")
        a("s_branch K23_QW")
        a.label("K23_QGO")
    a(f"s_lshl_b32 s{S_T0}, s{S_HD}, 6")
    a(f"s_add_u32 s{S_T0}, s{S_T0}, s{S_QB}")
    a(f"s_lshl_b32 s{S_T0}, s{S_T0}, 11")
    a(f"buffer_load_dwordx4 {vr(V_Q,4)}, v{V_L16}, s[{SRD_WS}:{SRD_WS+3}], s{S_T0} offen{SC()}")
    a(f"buffer_load_dwordx4 {vr(V_Q+4,4)}, v{V_L16}, s[{SRD_WS}:{SRD_WS+3}], s{S_T0} offen offset:1024{SC()}")
    for u in range(3):
        a(f"s_lshl_b32 s{S_T0}, s{S_T4}, 2")
        a(f"s_add_u32 s{S_T0}, s{S_T0}, s{S_W}")
        a(f"s_add_i32 s{S_T0}, s{S_T0}, {4*u - 8}")
        a(f"s_max_i32 s{S_T0}, s{S_T0}, 0")
        a(f"s_lshl_b32 s{S_T1}, s{S_HD}, 6")
        a(f"s_add_u32 s{S_T0}, s{S_T0}, s{S_T1}")
        a(f"s_lshl_b32 s{S_T0}, s{S_T0}, 11")
        a(f"s_add_u32 s{S_T1}, s{S_T0}, {16*64*2048}")
        a(f"s_add_u32 s{S_T2}, s{S_T0}, {32*64*2048}")
        a(f"s_lshl_b32 s{S_T3}, s{S_W}, 12")
        a(f"s_add_u32 s{S_T3}, s{S_T3}, {u*16384 + LDS_A}")
        a(f"s_mov_b32 m0, s{S_T3}")
        a("s_nop 0")
        a(f"buffer_load_dwordx4 v{V_L16}, s[{SRD_WS}:{SRD_WS+3}], s{S_T1} offen{SC()} lds")
        a(f"buffer_load_dwordx4 v{V_L16}, s[{SRD_WS}:{SRD_WS+3}], s{S_T1} offen offset:1024{SC()} lds")
        a(f"s_add_u32 m0, s{S_T3}, 2048")
        a("s_nop 0")
        a(f"buffer_load_dwordx4 v{V_VV}, s[{SRD_WS}:{SRD_WS+3}], s{S_T2} offen{SC()} lds")
        a(f"s_add_u32 m0, s{S_T3}, 3072")
        a(f"s_add_u32 s{S_T2}, s{S_T2}, 256")
        a(f"buffer_load_dwordx4 v{V_VV}, s[{SRD_WS}:{SRD_WS+3}], s{S_T2} offen{SC()} lds")
    def lds_sync(off, tag):
        a(f"v_mov_b32 v{V_X}, {LDS_SYNC}")
        a(f"v_mov_b32 v{V_X+1}, 1")
        a("s_mov_b64 exec, 1")
        a(f"ds_add_u32 v{V_X}, v{V_X+1} offset:{off}")
        a("s_mov_b64 exec, -1")
        a.label(f"K23_SP{tag}")
        a(f"ds_read_b32 v{V_X+1}, v{V_X} offset:{off}")
        a("s_waitcnt lgkmcnt(0)")
        a(f"v_readfirstlane_b32 s{S_T0}, v{V_X+1}")
        a(f"s_cmp_ge_u32 s{S_T0}, 4")
        a(f"s_cbranch_scc1 K23_SG{tag}")
        a("s_sleep 1")
        a(f"s_branch K23_SP{tag}")
        a.label(f"K23_SG{tag}")
    a("s_waitcnt vmcnt(0)")
    lds_sync(0, "a")
    st()
    NEG = "0xf149f2ca"
    def kread(j):
        b = V_KF + 8 * (j & 1)
        a(f"ds_read_b128 {vr(b,4)}, v{V_KA} offset:{j*4096}")
        a(f"ds_read_b128 {vr(b+4,4)}, v{V_KA} offset:{j*4096+1024}")
    kread(0)
    for j in range(9):
        if j + 1 < 9:
            kread(j + 1); a("s_waitcnt lgkmcnt(2)")
        else:
            a("s_waitcnt lgkmcnt(0)")
        b = V_KF + 8 * (j & 1); S = vr(V_S + 16 * j, 16)
        a(f"v_mfma_f32_32x32x16_bf16 {S}, {vr(b,4)}, {vr(V_Q,4)}, 0")
        a(f"v_mfma_f32_32x32x16_bf16 {S}, {vr(b+4,4)}, {vr(V_Q+4,4)}, {S}")
    a(f"s_cmp_ge_u32 s{S_QB}, 8")
    a("s_cbranch_scc1 K2_NOINV")
    a("s_nop 15")
    for j in range(8):
        a(f"s_add_u32 s{S_T0}, s{S_QB}, {j}")
        a(f"s_cmp_ge_u32 s{S_T0}, 8")
        a(f"s_cbranch_scc1 K2_NOINV2")
        for r in range(16): a(f"v_mov_b32 v{V_S+16*j+r}, {NEG}")
    a.label("K2_NOINV2")
    a.label("K2_NOINV")
    a(f"v_mov_b32 v{V_X}, {NEG}")
    for r in range(16):
        cc = 8 * (r >> 2) + (r & 3)
        sp = 44 + 2 * (r % 4)
        a(f"v_cmp_lt_i32 s[{sp}:{sp+1}], v{V_T}, {cc}")
        if r >= 2:
            rr = r - 2; sq = 44 + 2 * (rr % 4)
            a(f"v_cndmask_b32 v{V_S+rr}, v{V_X}, v{V_S+rr}, s[{sq}:{sq+1}]")
            a(f"v_cndmask_b32 v{V_S+128+rr}, v{V_S+128+rr}, v{V_X}, s[{sq}:{sq+1}]")
    for rr in (14, 15):
        sq = 44 + 2 * (rr % 4)
        a(f"v_cndmask_b32 v{V_S+rr}, v{V_X}, v{V_S+rr}, s[{sq}:{sq+1}]")
        a(f"v_cndmask_b32 v{V_S+128+rr}, v{V_S+128+rr}, v{V_X}, s[{sq}:{sq+1}]")
    MX = [V_X + 1, V_X + 2, V_X + 3, V_X + 4]
    for i in range(4):
        a(f"v_max_f32 v{MX[i]}, v{V_S+i}, v{V_S+4+i}")
    for i in range(8, 144, 8):
        for q in range(4):
            a(f"v_max3_f32 v{MX[q]}, v{MX[q]}, v{V_S+i+q}, v{V_S+i+4+q}")
    a(f"v_max3_f32 v{MX[0]}, v{MX[0]}, v{MX[1]}, v{MX[2]}")
    a(f"v_max_f32 v{MX[0]}, v{MX[0]}, v{MX[3]}")
    a(f"v_mov_b32 v{MX[1]}, v{MX[0]}")
    a(f"v_permlane32_swap_b32 v{MX[0]}, v{MX[1]}")
    a(f"v_max_f32 v{MX[0]}, v{MX[0]}, v{MX[1]}")
    CS = 0.18898223650461362 * 1.4426950408889634
    cbits = struct.unpack("<I", struct.pack("<f", CS))[0]
    a(f"s_mov_b32 s{S_T0}, {cbits:#x}")
    NM = V_X + 5
    a(f"v_mul_f32 v{NM}, s{S_T0}, v{MX[0]}")
    a(f"v_sub_f32 v{NM}, 0, v{NM}")
    st()
    def vread(j, sp):
        b = V_VF + 4 * ((2 * j + sp) % 4)
        off = j * 4096 + sp * 1024
        a(f"ds_read_b64_tr_b16 {vr(b,2)}, v{V_TRV} offset:{off}")
        a(f"ds_read_b64_tr_b16 {vr(b+2,2)}, v{V_TRV} offset:{off+512}")
    vread(0, 0); vread(0, 1)
    for j in range(9):
        for sp in range(2):
            n = 2 * j + sp
            S = V_S + 16 * j + 8 * sp
            P = V_P + 4 * (n % 4)
            for r in range(8): a(f"v_fma_f32 v{S+r}, v{S+r}, s{S_T0}, v{NM}")
            for r in range(8): a(f"v_exp_f32 v{S+r}, v{S+r}")
            for r in range(4): a(f"v_cvt_pk_bf16_f32 v{P+r}, v{S+2*r}, v{S+2*r+1}")
            m = n + 2
            if m < 18:
                vread(m // 2, m % 2); a("s_waitcnt lgkmcnt(4)")
            elif m == 18: a("s_waitcnt lgkmcnt(2)")
            else: a("s_waitcnt lgkmcnt(0)")
            b = V_VF + 4 * (n % 4)
            a(f"v_mfma_f32_32x32x16_bf16 {vr(V_O,16)}, {vr(b,4)}, {vr(P,4)}, {'0' if n == 0 else vr(V_O,16)}")
    st()
    L0, L1, RI, RP = V_X, V_X + 1, V_X + 2, V_X + 3
    a("s_nop 7")
    a(f"v_mov_b32 v{L0}, v{V_O+12}")
    a(f"v_mov_b32 v{L1}, v{V_O+12}")
    a(f"v_permlane32_swap_b32 v{L0}, v{L1}")
    a(f"v_rcp_f32 v{RI}, v{L1}")
    a(f"v_cndmask_b32 v{RP}, v{RI}, 0, s[{S_MHI}:{S_MHI+1}]")
    for r in range(16):
        a(f"v_mul_f32 v{V_O+r}, v{V_O+r}, v{RI if r < 12 else RP}")
    for r in range(8):
        a(f"v_cvt_pk_bf16_f32 v{V_P+r}, v{V_O+2*r}, v{V_O+2*r+1}")
    a(f"s_lshl_b32 s{S_T0}, s{S_QB}, 4")
    a(f"s_add_u32 s{S_T0}, s{S_T0}, s{S_HD}")
    a(f"s_lshl_b32 s{S_T0}, s{S_T0}, 11")
    a(f"s_add_u32 s{S_T0}, s{S_T0}, {WS_O}")
    a(f"buffer_store_dwordx4 {vr(V_P,4)}, v{V_L16}, s[{SRD_WS}:{SRD_WS+3}], s{S_T0} offen sc0 sc1")
    a(f"buffer_store_dwordx4 {vr(V_P+4,4)}, v{V_L16}, s[{SRD_WS}:{SRD_WS+3}], s{S_T0} offen offset:1024 sc0 sc1")
    a("s_waitcnt vmcnt(0)")
    lds_sync(4, "b")
    a(f"s_cmp_lg_u32 s{S_W}, 0")
    a("s_cbranch_scc1 K23_NOSIG")
    a(f"s_lshr_b32 s{S_T0}, s{S_HD}, 2")
    a(f"s_lshl_b32 s{S_T1}, s{S_T4}, 2")
    a(f"s_add_u32 s{S_T0}, s{S_T0}, s{S_T1}")
    a(f"v_mov_b32 v{V_X}, 1")
    a(f"v_mov_b32 v{V_X+1}, 0")
    a(f"s_lshl_b32 s{S_T0}, s{S_T0}, 7")
    a(f"s_add_u32 s{S_T0}, s{S_T0}, {WS_CNT}")
    a("s_mov_b64 exec, 1")
    a(f"buffer_atomic_add v{V_X}, v{V_X+1}, s[{SRD_WS}:{SRD_WS+3}], s{S_T0} offen sc1")
    a("s_mov_b64 exec, -1")
    a.label("K23_NOSIG")
    st()
    a(f"s_cmp_ge_u32 s{S_FB}, 7")
    a("s_cbranch_scc1 K23_END0")
    V_TR, V_WV = 16, 20
    V_WF = 24; V_ACC = 96; V_BF = 160
    S_L0, S_WO, S_BO = 41, 42, 43
    SRD_WOO = 20
    a(f"s_lshl_b32 s{S_L0}, s{S_W}, 14")
    a(f"s_add_u32 s{S_L0}, s{S_L0}, {LDS_A}")
    tile_common(a, V_X, V_LANE, V_TR, V_WV, S_T0, S_L0)
    srd(a, SRD_WOO, 16, 401408)
    a(f"s_mul_i32 s{S_WO}, s{S_W}, {112*896}")
    a(f"s_lshl_b32 s{S_T0}, s{S_FB}, 7")
    a(f"s_add_u32 s{S_WO}, s{S_WO}, s{S_T0}")
    for u in range(8):
        a(f"s_add_u32 m0, s{S_L0}, {u*2048}")
        a(f"s_add_u32 s{S_T0}, s{S_WO}, {8*896}")
        a(f"buffer_load_dwordx4 v{V_WV}, s[{SRD_WOO}:{SRD_WOO+3}], s{S_WO} offen lds")
        a(f"s_add_u32 m0, s{S_L0}, {u*2048+1024}")
        a("s_nop 0")
        a(f"buffer_load_dwordx4 v{V_WV}, s[{SRD_WOO}:{SRD_WOO+3}], s{S_T0} offen lds")
        a(f"s_add_u32 s{S_WO}, s{S_WO}, {16*896 if u % 2 == 0 else 12*896}")
    a(f"s_lshr_b32 s{S_T0}, s{S_TB}, 1")
    a(f"s_lshl_b32 s{S_T0}, s{S_T0}, 2")
    a(f"s_add_u32 s{S_T0}, s{S_T0}, s{S_W}")
    a(f"s_lshl_b32 s{S_T0}, s{S_T0}, 7")
    a(f"s_add_u32 s{S_T0}, s{S_T0}, {WS_CNT}")
    a(f"v_mov_b32 v{V_X+1}, 0")
    a.label("K23_POLL")
    a(f"buffer_load_dword v{V_X}, v{V_X+1}, s[{SRD_WS}:{SRD_WS+3}], s{S_T0} offen sc0 sc1")
    a("s_waitcnt vmcnt(0)")
    a(f"v_readfirstlane_b32 s{S_T1}, v{V_X}")
    a(f"s_cmp_ge_u32 s{S_T1}, 4")
    a("s_cbranch_scc1 K23_READY")
    a("s_sleep 8")
    a("s_branch K23_POLL")
    a.label("K23_READY")
    st()
    a(f"s_lshl_b32 s{S_BO}, s{S_TB}, 16")
    a(f"s_lshl_b32 s{S_T0}, s{S_W}, 13")
    a(f"s_add_u32 s{S_BO}, s{S_BO}, s{S_T0}")
    a(f"s_add_u32 s{S_BO}, s{S_BO}, {WS_O}")
    for u in range(8):
        b = V_BF + 8 * u
        a(f"buffer_load_dwordx4 {vr(b,4)}, v{V_L16}, s[{SRD_WS}:{SRD_WS+3}], s{S_BO} offen sc0 sc1")
        a(f"s_add_u32 s{S_T0}, s{S_BO}, 32768")
        a(f"buffer_load_dwordx4 {vr(b+4,4)}, v{V_L16}, s[{SRD_WS}:{SRD_WS+3}], s{S_T0} offen sc0 sc1")
        a(f"s_add_u32 s{S_BO}, s{S_BO}, 1024")
    def trread(u):
        w = V_WF + 8 * (u % 2)
        for ft in range(2):
            a(f"ds_read_b64_tr_b16 {vr(w+4*ft,2)}, v{V_TR+2*ft} offset:{u*2048}")
            a(f"ds_read_b64_tr_b16 {vr(w+4*ft+2,2)}, v{V_TR+2*ft+1} offset:{u*2048}")
    trread(0)
    for u in range(8):
        if u + 1 < 8:
            trread(u + 1); a("s_waitcnt lgkmcnt(4)")
        else: a("s_waitcnt lgkmcnt(0)")
        a(f"s_waitcnt vmcnt({2*(7-u)})")
        w = V_WF + 8 * (u % 2); b = V_BF + 8 * u
        for th in range(2):
            for ft in range(2):
                A = vr(V_ACC + 16 * (2 * th + ft), 16)
                a(f"v_mfma_f32_32x32x16_bf16 {A}, {vr(w+4*ft,4)}, {vr(b+4*th,4)}, {'0' if u == 0 else A}")
    a(f"v_add_u32 v{V_X}, s{S_L0}, v{V_L16}")
    for t in range(4):
        for q in range(4):
            a(f"ds_write_b128 v{V_X}, {vr(V_ACC+16*t+4*q,4)} offset:{t*4096+q*1024}")
    st()

def gemm(a, st):
    V_LANE, V_L16, V_WV, V_TR = 1, 2, 3, 4
    V_X = 8; V_WF = 16; V_BF = 32; V_DN = 128
    S_W, S_TB, S_FB = 3, 52, 53
    S_T0, S_T1, S_T2, S_T3 = 36, 37, 38, 39
    S_WO, S_BO, S_L0 = 40, 41, 42
    SRD_WS, SRD_WD = 4, 8
    a(f"s_lshl_b32 s{S_L0}, s{S_W}, 14")
    a(f"s_add_u32 s{S_L0}, s{S_L0}, {LDS_G}")
    tile_common(a, V_X, V_LANE, V_TR, V_WV, S_T0, S_L0)
    a("s_waitcnt lgkmcnt(0)")
    a(f"s_cmp_ge_u32 s{S_FB}, 7")
    a("s_cbranch_scc1 K23_END0")
    srd(a, SRD_WS, 10, WS_SIZE)
    srd(a, SRD_WD, 14, 1605632)
    a(f"s_mul_i32 s{S_WO}, s{S_W}, {28*16*896}")
    a(f"s_lshl_b32 s{S_T0}, s{S_FB}, 7")
    a(f"s_add_u32 s{S_WO}, s{S_WO}, s{S_T0}")
    a(f"s_lshl_b32 s{S_T1}, s{S_TB}, 1")
    a(f"s_mul_i32 s{S_BO}, s{S_T1}, 112")
    a(f"s_mul_i32 s{S_T2}, s{S_W}, 28")
    a(f"s_add_u32 s{S_BO}, s{S_BO}, s{S_T2}")
    a(f"s_lshl_b32 s{S_BO}, s{S_BO}, 10")
    a(f"s_add_u32 s{S_BO}, s{S_BO}, {WS_H}")
    NS = 28
    ops = []
    def issue_w(n):
        slot = n % WL
        a(f"s_add_u32 m0, s{S_L0}, {slot*2048}")
        a(f"s_add_u32 s{S_T0}, s{S_WO}, {8*896}")
        a(f"buffer_load_dwordx4 v{V_WV}, s[{SRD_WD}:{SRD_WD+3}], s{S_WO} offen lds")
        a(f"s_add_u32 m0, s{S_L0}, {slot*2048+1024}")
        a("s_nop 0")
        a(f"buffer_load_dwordx4 v{V_WV}, s[{SRD_WD}:{SRD_WD+3}], s{S_T0} offen lds")
        a(f"s_add_u32 s{S_WO}, s{S_WO}, {16*896}")
        ops.extend([("w", n)] * 2)
    def issue_b(n):
        b = V_BF + 8 * (n % HB)
        a(f"buffer_load_dwordx4 {vr(b,4)}, v{V_L16}, s[{SRD_WS}:{SRD_WS+3}], s{S_BO} offen{SC()}")
        a(f"s_add_u32 s{S_T0}, s{S_BO}, {112*1024}")
        a(f"buffer_load_dwordx4 {vr(b+4,4)}, v{V_L16}, s[{SRD_WS}:{SRD_WS+3}], s{S_T0} offen{SC()}")
        a(f"s_add_u32 s{S_BO}, s{S_BO}, 1024")
        ops.extend([("b", n)] * 2)
    def wait_for(tags):
        idx = max(i for i, t in enumerate(ops) if t in tags)
        a(f"s_waitcnt vmcnt({len(ops)-1-idx})")
    def trread(n):
        slot = n % WL; w = V_WF + 8 * (n % 2)
        for ft in range(2):
            a(f"ds_read_b64_tr_b16 {vr(w+4*ft,2)}, v{V_TR+2*ft} offset:{slot*2048}")
            a(f"ds_read_b64_tr_b16 {vr(w+4*ft+2,2)}, v{V_TR+2*ft+1} offset:{slot*2048}")
    if FUSED:
        for n in range(WL - 1): issue_w(n)
        a(f"v_mov_b32 v{V_X}, {LDS_SYNC}")
        a(f"s_cmp_lg_u32 s{S_W}, 0")
        a("s_cbranch_scc1 K23_HW")
        a(f"s_lshr_b32 s{S_T0}, s{S_TB}, 1")
        a(f"s_lshl_b32 s{S_T0}, s{S_T0}, 7")
        a(f"s_add_u32 s{S_T0}, s{S_T0}, 0xF02000")
        a(f"v_mov_b32 v{V_X+1}, 0")
        a.label("K23_HP")
        a(f"buffer_load_dword v{V_X+2}, v{V_X+1}, s[{SRD_WS}:{SRD_WS+3}], s{S_T0} offen sc0 sc1")
        a("s_waitcnt vmcnt(0)")
        a(f"v_readfirstlane_b32 s{S_T1}, v{V_X+2}")
        a(f"s_cmp_ge_u32 s{S_T1}, 12")
        a("s_cbranch_scc1 K23_HOK")
        a("s_sleep 4")
        a("s_branch K23_HP")
        a.label("K23_HOK")
        a(f"v_mov_b32 v{V_X+1}, 1")
        a(f"ds_write_b32 v{V_X}, v{V_X+1} offset:12")
        a("s_branch K23_HGO")
        a.label("K23_HW")
        a(f"ds_read_b32 v{V_X+1}, v{V_X} offset:12")
        a("s_waitcnt lgkmcnt(0)")
        a(f"v_readfirstlane_b32 s{S_T0}, v{V_X+1}")
        a(f"s_cmp_lg_u32 s{S_T0}, 0")
        a("s_cbranch_scc1 K23_HGO")
        a("s_sleep 2")
        a("s_branch K23_HW")
        a.label("K23_HGO")
        for n in range(HB - 1): issue_b(n)
    else:
        for n in range(HB - 1):
            if n < WL - 1: issue_w(n)
            issue_b(n)
    st()
    wait_for([("w", 0)])
    trread(0)
    for n in range(NS):
        if n + HB - 1 < NS: issue_b(n + HB - 1)
        if n + WL - 1 < NS: issue_w(n + WL - 1)
        if n + 1 < NS:
            wait_for([("w", n + 1), ("b", n)])
            trread(n + 1)
            a("s_waitcnt lgkmcnt(4)")
        else:
            wait_for([("b", n)])
            a("s_waitcnt lgkmcnt(0)")
        w = V_WF + 8 * (n % 2); b = V_BF + 8 * (n % HB)
        for th in range(2):
            for ft in range(2):
                A = vr(V_DN + 16 * (2 * th + ft), 16)
                a(f"v_mfma_f32_32x32x16_bf16 {A}, {vr(w+4*ft,4)}, {vr(b+4*th,4)}, {'0' if n == 0 else A}")
    st()
    a(f"v_add_u32 v{V_X}, s{S_L0}, v{V_L16}")
    for t in range(4):
        for q in range(4):
            a(f"ds_write_b128 v{V_X}, {vr(V_DN+16*t+4*q,4)} offset:{t*4096+q*1024}")
    st()

def final(a, st):
    V_LANE, V_L16 = 1, 2
    V_X = 8; DN = 32; SS = 40; RD = 48; XV = 120; TT = 128; V_XO = 16
    S_U, S_TB, S_FB = 97, 52, 53
    S_T0, S_T1, S_T2, S_T3 = 36, 37, 38, 39
    SRD_X, SRD_OUT = 24, 28
    srd(a, SRD_X, 18, 1835008)
    srd(a, SRD_OUT, 56, 1835008)
    a(f"s_and_b32 s{S_T0}, s{S_U}, 3")
    a(f"s_lshr_b32 s{S_T1}, s{S_T0}, 1")
    a(f"s_lshl_b32 s{S_T2}, s{S_TB}, 1")
    a(f"s_add_u32 s{S_T2}, s{S_T2}, s{S_T1}")
    a(f"s_mul_i32 s{S_T2}, s{S_T2}, {32*896}")
    a(f"s_lshl_b32 s{S_T3}, s{S_FB}, 7")
    a(f"s_add_u32 s{S_T2}, s{S_T2}, s{S_T3}")
    a(f"s_and_b32 s{S_T1}, s{S_U}, 1")
    a(f"s_lshl_b32 s{S_T1}, s{S_T1}, 6")
    a(f"s_add_u32 s{S_T2}, s{S_T2}, s{S_T1}")
    a(f"s_lshr_b32 s{S_T1}, s{S_U}, 2")
    a(f"s_lshl_b32 s{S_T3}, s{S_T1}, 4")
    a(f"s_add_u32 s{S_T2}, s{S_T2}, s{S_T3}")
    a(f"v_and_b32 v{V_X}, 31, v{V_LANE}")
    a(f"s_movk_i32 s{S_T3}, 896")
    a(f"v_mul_u32_u24 v{V_X}, s{S_T3}, v{V_X}")
    a(f"v_lshrrev_b32 v{V_X+1}, 5, v{V_LANE}")
    a(f"v_lshl_add_u32 v{V_XO}, v{V_X+1}, 5, v{V_X}")
    a(f"buffer_load_dwordx4 {vr(XV,4)}, v{V_XO}, s[{SRD_X}:{SRD_X+3}], s{S_T2} offen")
    a(f"s_lshl_b32 s{S_T0}, s{S_T0}, 12")
    a(f"s_lshl_b32 s{S_T1}, s{S_T1}, 11")
    a(f"s_add_u32 s{S_T0}, s{S_T0}, s{S_T1}")
    a(f"v_add_u32 v{V_X}, s{S_T0}, v{V_L16}")
    a("s_waitcnt lgkmcnt(0)")
    a("s_barrier")
    for g in range(4):
        for q in range(2):
            a(f"ds_read_b128 {vr(RD+16*g+4*q,4)}, v{V_X} offset:{g*16384+q*1024}")
    a(f"v_add_u32 v{V_X}, {LDS_G}, v{V_X}")
    for g in range(4):
        for q in range(2):
            a(f"ds_read_b128 {vr(RD+16*g+8+4*q,4)}, v{V_X} offset:{g*16384+q*1024}")
    a("s_waitcnt lgkmcnt(0)")
    for r in range(16):
        a(f"v_add_f32 v{RD+r}, v{RD+r}, v{RD+16+r}")
        a(f"v_add_f32 v{RD+32+r}, v{RD+32+r}, v{RD+48+r}")
    for r in range(16):
        a(f"v_add_f32 v{RD+r}, v{RD+r}, v{RD+32+r}")
    SS, DN = RD, RD + 8
    for r in range(8): a(f"v_mul_f32 v{TT+r}, 0xbfb8aa3b, v{DN+r}")
    for r in range(8): a(f"v_exp_f32 v{TT+r}, v{TT+r}")
    for r in range(8): a(f"v_add_f32 v{TT+r}, 1.0, v{TT+r}")
    for r in range(8): a(f"v_rcp_f32 v{TT+r}, v{TT+r}")
    for r in range(8): a(f"v_mul_f32 v{DN+r}, v{DN+r}, v{TT+r}")
    a("s_waitcnt vmcnt(0)")
    for r in range(4):
        a(f"v_lshlrev_b32 v{TT+2*r}, 16, v{XV+r}")
        a(f"v_and_b32 v{TT+2*r+1}, 0xffff0000, v{XV+r}")
    for r in range(8): a(f"v_fma_f32 v{TT+r}, v{SS+r}, v{DN+r}, v{TT+r}")
    for r in range(4): a(f"v_cvt_pk_bf16_f32 v{XV+r}, v{TT+2*r}, v{TT+2*r+1}")
    a(f"buffer_store_dwordx4 {vr(XV,4)}, v{V_XO}, s[{SRD_OUT}:{SRD_OUT+3}], s{S_T2} offen")

P1 = None
def gen_fused(a):
    global FUSED
    FUSED = True; gen2.FUSED = True
    (P1 or gen2.gen_k1)(a)
    gen_k23(a, True)
    FUSED = False; gen2.FUSED = False

def gen_k23(a, fused=False):
    st = Stamper(a, STAMP)
    if not fused:
        a("s_cmp_ge_u32 s2, 256")
        a("s_cbranch_scc1 K23_END")
    st()
    a("s_load_dwordx2 s[10:11], s[0:1], 72")
    a("s_load_dwordx2 s[14:15], s[0:1], 48")
    a("s_load_dwordx2 s[16:17], s[0:1], 16")
    a("s_load_dwordx2 s[18:19], s[0:1], 0")
    a("s_load_dwordx2 s[56:57], s[0:1], 56")
    a("v_and_b32 v1, 63, v0")
    a("v_lshrrev_b32 v6, 6, v0")
    a("v_lshlrev_b32 v2, 4, v1")
    a("v_readfirstlane_b32 s3, v6")
    a(f"v_mov_b32 v6, {LDS_SYNC}")
    a("v_mov_b32 v8, 0")
    a("v_mov_b32 v9, 0")
    a("v_mov_b32 v10, 0")
    a("v_mov_b32 v11, 0")
    a("ds_write_b128 v6, v[8:11]")
    a("s_and_b32 s36, s2, 7")
    a("s_lshr_b32 s37, s2, 3")
    a("s_lshl_b32 s52, s36, 2")
    a("s_and_b32 s38, s37, 3")
    a("s_add_u32 s52, s52, s38")
    a("s_lshr_b32 s53, s37, 2")
    a("s_waitcnt lgkmcnt(0)")
    a("s_barrier")
    a("s_mov_b32 s97, s3")
    a("s_cmp_lt_u32 s3, 4")
    a("s_cbranch_scc1 K23_ATT")
    a("s_sub_u32 s3, s3, 4")
    gemm(a, st)
    a("s_branch K23_FIN")
    a.label("K23_ATT")
    st.n = 1
    attention(a, st)
    a.label("K23_FIN")
    final(a, st)
    a.label("K23_END0")
    if STAMP:
        a("s_waitcnt vmcnt(0)")
        st.n = 8
        st()
        a("s_load_dwordx2 s[16:17], s[0:1], 72")
        a("s_waitcnt lgkmcnt(0)")
        a("s_add_u32 s16, s16, 0x4000000")
        a("s_addc_u32 s17, s17, 0")
        a("s_mov_b32 s18, 65536")
        a("s_mov_b32 s19, 0x00020000")
        a("s_cmp_lg_u32 s2, 37")
        a("s_cbranch_scc1 K23_END")
        a("s_lshl_b32 s15, s97, 7")
        a("v_and_b32 v241, 63, v0")
        a("v_lshlrev_b32 v241, 2, v241")
        a("v_cmp_gt_u32 vcc, 128, v241")
        a("s_and_saveexec_b64 s[98:99], vcc")
        a("buffer_store_dword v252, v241, s[16:19], s15 offen")
    a.label("K23_END")
    if fused: a.label("K1_END")
    a("s_endpgm")

K1 = ("k1_kernel", gen2.gen_k1, 256, 512, 163840, 252, 102)
K23 = ("k23_kernel", gen_k23, 256, 512, 131088 + 112, 256, 102)
KF = (NAME + "_kernel", gen_fused, 256, 512, 163840, 256, 102)
if __name__ == "__main__":
    gen2.STF = ' sc0 sc1'
    build([K1, K23], "all3.s")
    build([KF], "fused.s")
    STAMP = True
    build([K1, K23], "all3st.s")
```

```python
from asmlib import Asm
from gen import vr, sr, srd, kernel_desc, HEADER, build, NAME, WS_QKV, WS_H, WS_O, WS_SIZE
from gen2 import Stamper

STAMP = False
EXP = 1
TOUCH = False
FUSED = True
STF = ' sc0 sc1'
WS_XN = 0x1000000
PFW = True

def gen_k1(a):
    st = Stamper(a, STAMP)
    PF = 3
    NSL = 6
    PR = 24576
    XST = 122880
    V_LANE, V_L16 = 1, 2
    V_VOFF = 3
    V_X0, V_X1 = 6, 7
    V_TR = 8
    V_XR = 18
    V_CS = 240
    V_SUM, V_SQ = 20, 21
    V_SUM2, V_SQ2 = 22, 23
    V_U = 24
    V_WF = 28
    V_ACC = 44
    V_XN = 124
    V_X = 236
    S_W, S_TM, S_TN, S_T, S_G = 3, 33, 34, 35, 36
    S_5G, S_TOK, S_SUB, S_BLK = 37, 38, 39, 32
    S_MHI = 40
    S_M = 42
    S_SO = 44
    S_INC = 47
    S_T0, S_T1, S_T2, S_T3 = 54, 55, 56, 57
    S_M0 = 58
    S_STO = 61
    S_XSO = 62
    S_XM = 63
    SRD_X, SRD_WS = 4, 20
    SRD_J = 64
    SRD_TMP = 76
    S_ONE = 80

    a("s_cmp_ge_u32 s2, 256")
    a("s_cbranch_scc1 K1_END")
    st()
    a("s_load_dwordx2 s[16:17], s[0:1], 0")
    a("s_load_dwordx2 s[8:9], s[0:1], 8")
    a("s_load_dwordx4 s[12:15], s[0:1], 32")
    a("s_load_dwordx2 s[10:11], s[0:1], 72")
    a("s_load_dwordx2 s[82:83], s[0:1], 48")
    a("s_load_dwordx2 s[84:85], s[0:1], 16")
    a("s_load_dwordx2 s[88:89], s[0:1], 64")
    a(f"v_and_b32 v{V_LANE}, 63, v0")
    a(f"v_lshrrev_b32 v{V_X}, 6, v0")
    a(f"v_lshlrev_b32 v{V_L16}, 4, v{V_LANE}")
    a(f"v_readfirstlane_b32 s{S_W}, v{V_X}")
    a(f"s_and_b32 s{S_T0}, s2, 7")
    a(f"s_lshr_b32 s{S_T1}, s2, 3")
    a(f"s_and_b32 s{S_T}, s{S_T0}, 1")
    a(f"s_lshl_b32 s{S_T}, s{S_T}, 3")
    a(f"s_and_b32 s{S_T2}, s{S_T1}, 7")
    a(f"s_add_u32 s{S_T}, s{S_T}, s{S_T2}")
    a(f"s_lshr_b32 s{S_G}, s{S_T0}, 1")
    a(f"s_lshl_b32 s{S_G}, s{S_G}, 2")
    a(f"s_lshr_b32 s{S_T2}, s{S_T1}, 3")
    a(f"s_add_u32 s{S_G}, s{S_G}, s{S_T2}")
    a(f"s_mul_i32 s{S_5G}, s{S_G}, 5")
    a(f"s_and_b32 s{S_TM}, s{S_W}, 3")
    a(f"s_lshr_b32 s{S_TN}, s{S_W}, 2")
    a(f"s_and_b32 s{S_SUB}, s{S_W}, 1")
    a(f"s_bfe_u32 s{S_BLK}, s{S_W}, 0x10001")
    a(f"s_lshl_b32 s{S_TOK}, s{S_T}, 2")
    a(f"s_add_u32 s{S_TOK}, s{S_TOK}, s{S_TM}")
    a(f"s_mov_b32 s{S_MHI}, 0")
    a(f"s_mov_b32 s{S_MHI+1}, -1")
    a(f"s_mov_b32 s{S_ONE}, 0x3f803f80")
    R, C, MH, H, MG, X0, X1, X2, TQ, TG, VQ, VG = [V_X + i for i in range(12)]
    a(f"v_bfe_u32 v{R}, v{V_LANE}, 2, 2")
    a(f"v_and_b32 v{C}, 3, v{V_LANE}")
    a(f"v_bfe_u32 v{MH}, v{V_LANE}, 4, 1")
    a(f"v_lshrrev_b32 v{H}, 5, v{V_LANE}")
    a(f"v_lshl_add_u32 v{MG}, v{MH}, 2, v{C}")
    a(f"v_and_b32 v{X0}, 1, v{MG}")
    a(f"v_lshlrev_b32 v{X0}, 2, v{X0}")
    a(f"v_lshrrev_b32 v{X1}, 1, v{MG}")
    a(f"v_or_b32 v{X0}, v{X0}, v{X1}")
    a(f"v_min_u32 v{X0}, 6, v{X0}")
    a(f"s_mul_i32 s{S_T0}, s{S_TN}, 56")
    a(f"v_lshlrev_b32 v{X0}, 3, v{X0}")
    a(f"v_add_u32 v{X0}, s{S_T0}, v{X0}")
    a(f"v_lshrrev_b32 v{X1}, 4, v{X0}")
    a(f"v_bfe_u32 v{X2}, v{R}, 1, 1")
    a(f"v_lshlrev_b32 v{X2}, 2, v{X2}")
    a(f"v_xor_b32 v{X1}, v{X1}, v{X2}")
    a(f"v_and_b32 v{X0}, 15, v{X0}")
    a(f"v_lshl_add_u32 v{X0}, v{X1}, 4, v{X0}")
    a(f"v_lshl_add_u32 v{X2}, v{H}, 3, v{R}")
    a(f"v_lshl_add_u32 v{TQ}, v{X2}, 7, v{X0}")
    a(f"s_lshl_b32 s{S_T0}, s{S_TN}, 1")
    a(f"v_and_b32 v{X0}, 1, v{C}")
    a(f"v_add_u32 v{X0}, s{S_T0}, v{X0}")
    a(f"v_lshlrev_b32 v{X1}, 1, v{MH}")
    a(f"v_xor_b32 v{X0}, v{X0}, v{X1}")
    a(f"v_lshlrev_b32 v{X0}, 4, v{X0}")
    a(f"v_lshrrev_b32 v{X1}, 1, v{C}")
    a(f"v_lshl_add_u32 v{X0}, v{X1}, 3, v{X0}")
    a(f"v_lshl_add_u32 v{X0}, v{X2}, 6, v{X0}")
    a(f"v_lshl_add_u32 v{TG}, v{MH}, 10, v{X0}")
    a(f"v_lshrrev_b32 v{X0}, 3, v{V_LANE}")
    a(f"v_and_b32 v{X1}, 7, v{V_LANE}")
    a(f"v_bfe_u32 v{X2}, v{V_LANE}, 4, 1")
    a(f"v_lshlrev_b32 v{X2}, 2, v{X2}")
    a(f"v_xor_b32 v{X2}, v{X1}, v{X2}")
    a(f"v_lshlrev_b32 v{X2}, 4, v{X2}")
    a(f"s_movk_i32 s{S_T0}, 2688")
    a(f"v_mad_u32_u24 v{VQ}, v{X0}, s{S_T0}, v{X2}")
    a(f"v_lshrrev_b32 v{X2}, 1, v{X0}")
    a(f"v_xor_b32 v{X2}, v{X1}, v{X2}")
    a(f"v_lshlrev_b32 v{X2}, 4, v{X2}")
    a(f"s_movk_i32 s{S_T0}, 896")
    a(f"v_mad_u32_u24 v{V_X0}, v{X0}, s{S_T0}, v{X2}")
    a(f"v_xor_b32 v{V_X1}, 64, v{V_X0}")
    a(f"v_lshrrev_b32 v{X0}, 2, v{V_LANE}")
    a(f"v_lshlrev_b32 v{X1}, 4, v{C}")
    a(f"s_movk_i32 s{S_T0}, 3584")
    a(f"v_mad_u32_u24 v{VG}, v{X0}, s{S_T0}, v{X1}")
    a(f"s_lshl_b32 s{S_T0}, s{S_SUB}, 5")
    a(f"v_xor_b32 v{VG}, s{S_T0}, v{VG}")
    a(f"v_and_b32 v{X0}, 31, v{V_LANE}")
    a(f"v_bfe_u32 v{X1}, v{X0}, 1, 3")
    a(f"v_xor_b32 v{X1}, v{X1}, v{H}")
    a(f"v_lshlrev_b32 v{X1}, 4, v{X1}")
    a(f"v_lshl_add_u32 v{V_XR}, v{X0}, 7, v{X1}")
    a("s_waitcnt lgkmcnt(0)")
    st()
    srd(a, SRD_X, 16, 1835008)
    srd(a, SRD_WS, 10, WS_SIZE)
    a("s_mov_b32 s90, 256")
    a("s_mov_b32 s91, 0x00020000")
    SRD_DBG = 88
    SRD_XN = 92
    a(f"s_add_u32 s{SRD_XN}, s10, {WS_XN}")
    a(f"s_addc_u32 s{SRD_XN+1}, s11, 0")
    a(f"s_mov_b32 s{SRD_XN+2}, 1835008")
    a(f"s_mov_b32 s{SRD_XN+3}, 0x00020000")
    a(f"s_cmp_lg_u32 s{S_W}, 0")
    a("s_cbranch_scc1 K1_NOLN")
    LX = V_XN
    a(f"v_lshrrev_b32 v{X0}, 3, v{V_LANE}")
    a(f"v_and_b32 v{X1}, 7, v{V_LANE}")
    a(f"v_lshlrev_b32 v{X1}, 4, v{X1}")
    a(f"s_movk_i32 s{S_T0}, 896")
    VLN = V_XN + 60
    a(f"v_mad_u32_u24 v{VLN}, v{X0}, s{S_T0}, v{X1}")
    a(f"s_lshl_b32 s{S_T0}, s{S_T}, 7")
    a(f"s_lshl_b32 s{S_T1}, s{S_G}, 3")
    a(f"s_add_u32 s{S_T0}, s{S_T0}, s{S_T1}")
    a(f"s_mul_i32 s{S_STO}, s{S_T0}, 896")
    for i in range(7):
        a(f"buffer_load_dwordx4 {vr(LX+4*i,4)}, v{VLN}, s[{SRD_X}:{SRD_X+3}], s{S_STO} offen offset:{128*i}")
    a("s_cmp_lg_u32 s2, 0")
    a("s_cbranch_scc1 K1_NOZ")
    a(f"v_lshlrev_b32 v{X0}, 7, v{V_LANE}")
    a(f"v_mov_b32 v{X1}, 0")
    a(f"s_mov_b32 s{S_T0}, 0xF00000")
    a(f"buffer_store_dword v{X1}, v{X0}, s[{SRD_WS}:{SRD_WS+3}], s{S_T0} offen sc0 sc1")
    a(f"s_mov_b32 s{S_T0}, 0xF02000")
    a(f"buffer_store_dword v{X1}, v{X0}, s[{SRD_WS}:{SRD_WS+3}], s{S_T0} offen sc0 sc1")
    a("s_waitcnt vmcnt(0)")
    a(f"v_mov_b32 v{X0}, 0")
    a(f"v_mov_b32 v{X1}, 1")
    a("s_mov_b64 exec, 1")
    a(f"buffer_store_dword v{X1}, v{X0}, s[{SRD_DBG}:{SRD_DBG+3}], 0 offen sc0 sc1")
    a("s_mov_b64 exec, -1")
    a.label("K1_NOZ")
    a("s_waitcnt vmcnt(0)")
    LS, LQ, LM, LV, LR, LC = [V_XN + 64 + i for i in range(6)]
    LS2, LQ2 = V_XN + 70, V_XN + 71
    for r in (LS, LQ, LS2, LQ2): a(f"v_mov_b32 v{r}, 0")
    for i in range(28):
        a(f"v_dot2_f32_bf16 v{LS if i%2==0 else LS2}, v{LX+i}, s{S_ONE}, v{LS if i%2==0 else LS2}")
        a(f"v_dot2_f32_bf16 v{LQ if i%2==0 else LQ2}, v{LX+i}, v{LX+i}, v{LQ if i%2==0 else LQ2}")
    a(f"v_add_f32 v{LS}, v{LS}, v{LS2}")
    a(f"v_add_f32 v{LQ}, v{LQ}, v{LQ2}")
    for mod in ("quad_perm:[1,0,3,2]", "quad_perm:[2,3,0,1]", "row_half_mirror"):
        a(f"v_add_f32_dpp v{LS}, v{LS}, v{LS} {mod} row_mask:0xf bank_mask:0xf")
        a(f"v_add_f32_dpp v{LQ}, v{LQ}, v{LQ} {mod} row_mask:0xf bank_mask:0xf")
    a(f"v_mul_f32 v{LM}, 0x3b124925, v{LS}")
    a(f"v_mul_f32 v{LV}, 0x3b124925, v{LQ}")
    a(f"v_fma_f32 v{LV}, -v{LM}, v{LM}, v{LV}")
    a(f"v_max_f32 v{LV}, 0, v{LV}")
    def rbf0(r):
        a(f"v_cvt_pk_bf16_f32 v{r}, v{r}, v{r}")
        a(f"v_lshlrev_b32 v{r}, 16, v{r}")
    rbf0(LM); rbf0(LV)
    a(f"v_add_f32 v{LV}, 0x3727c5ac, v{LV}")
    rbf0(LV)
    a(f"v_sqrt_f32 v{LV}, v{LV}")
    rbf0(LV)
    a(f"v_rcp_f32 v{LR}, v{LV}")
    a(f"v_mul_f32 v{LC}, v{LM}, v{LR}")
    a(f"v_sub_f32 v{LC}, 0, v{LC}")
    TU = V_ACC
    for i0 in range(0, 28, 4):
        for i in range(4): a(f"v_lshlrev_b32 v{TU+2*i}, 16, v{LX+i0+i}")
        for i in range(4): a(f"v_and_b32 v{TU+2*i+1}, 0xffff0000, v{LX+i0+i}")
        for i in range(8): a(f"v_fma_f32 v{TU+i}, v{TU+i}, v{LR}, v{LC}")
        for i in range(4): a(f"v_cvt_pk_bf16_f32 v{LX+28+i0+i}, v{TU+2*i}, v{TU+2*i+1}")
    for i in range(7):
        a(f"buffer_store_dwordx4 {vr(LX+28+4*i,4)}, v{VLN}, s[{SRD_XN}:{SRD_XN+3}], s{S_STO} offen offset:{128*i} sc0 sc1")
    a(f"v_mov_b32 v{X1}, 0")
    a.label("K1_INITP0")
    a(f"buffer_load_dword v{X0}, v{X1}, s[{SRD_DBG}:{SRD_DBG+3}], 0 offen sc0 sc1")
    a("s_waitcnt vmcnt(0)")
    a(f"v_readfirstlane_b32 s{S_T0}, v{X0}")
    a(f"s_cmp_lg_u32 s{S_T0}, 0")
    a("s_cbranch_scc1 K1_INITOK0")
    a("s_sleep 2")
    a("s_branch K1_INITP0")
    a.label("K1_INITOK0")
    a(f"s_lshl_b32 s{S_T0}, s{S_T}, 7")
    a(f"s_add_u32 s{S_T0}, s{S_T0}, 0xF03000")
    a(f"v_mov_b32 v{X0}, 1")
    a("s_mov_b64 exec, 1")
    a(f"buffer_atomic_add v{X0}, v{X1}, s[{SRD_WS}:{SRD_WS+3}], s{S_T0} offen sc1")
    a("s_mov_b64 exec, -1")
    a.label("K1_NOLN")
    a("s_mov_b32 s30, 1204224")
    a("s_mov_b32 s31, 86016")
    a("s_mov_b32 s29, 512")
    if TOUCH:
        T8 = S_T0
        a(f"s_cmp_ge_u32 s{S_W}, 5")
        a("s_cbranch_scc1 K1_TX")
        a(f"v_min_u32 v{X0}, 55, v{V_LANE}")
        a(f"s_and_b32 s{S_T0}, s{S_T}, 7")
        a(f"s_mul_i32 s{S_T0}, s{S_T0}, 56")
        a(f"v_add_u32 v{X0}, s{S_T0}, v{X0}")
        a(f"s_add_u32 s{S_T1}, s{S_5G}, s{S_W}")
        a(f"s_cmp_lt_u32 s{S_T1}, 56")
        a("s_cbranch_scc0 K1_TQ")
        a(f"s_movk_i32 s{S_T2}, 3584")
        a(f"v_mul_u32_u24 v{X0}, s{S_T2}, v{X0}")
        a(f"s_lshl_b32 s{S_T1}, s{S_T1}, 6")
        srd(a, SRD_TMP, 12, 1605632)
        a(f"buffer_load_dword v{X1}, v{X0}, s[{SRD_TMP}:{SRD_TMP+3}], s{S_T1} offen")
        a(f"s_mov_b32 s{SRD_TMP}, s14")
        a(f"s_mov_b32 s{SRD_TMP+1}, s15")
        a(f"buffer_load_dword v{X2}, v{X0}, s[{SRD_TMP}:{SRD_TMP+3}], s{S_T1} offen")
        a("s_branch K1_TDONE")
        a.label("K1_TQ")
        a(f"s_movk_i32 s{S_T2}, 2688")
        a(f"v_mul_u32_u24 v{X0}, s{S_T2}, v{X0}")
        a(f"s_sub_u32 s{S_T1}, s{S_T1}, 56")
        a(f"s_mul_i32 s{S_T1}, s{S_T1}, 112")
        srd(a, SRD_TMP, 8, 1204224)
        a(f"buffer_load_dword v{X1}, v{X0}, s[{SRD_TMP}:{SRD_TMP+3}], s{S_T1} offen")
        a(f"buffer_load_dword v{X2}, v{X0}, s[{SRD_TMP}:{SRD_TMP+3}], s{S_T1} offen offset:108")
        a("s_branch K1_TDONE")
        a.label("K1_TX")
        a(f"s_sub_u32 s{S_T0}, s{S_W}, 5")
        a(f"s_lshl_b32 s{S_T0}, s{S_T0}, 13")
        a(f"s_and_b32 s{S_T1}, s{S_G}, 3")
        a(f"s_lshl_b32 s{S_T1}, s{S_T1}, 5")
        a(f"s_lshl_b32 s{S_T2}, s{S_T}, 7")
        a(f"s_add_u32 s{S_T1}, s{S_T1}, s{S_T2}")
        a(f"s_mul_i32 s{S_T1}, s{S_T1}, 896")
        a(f"s_add_u32 s{S_T1}, s{S_T1}, s{S_T0}")
        a(f"v_lshlrev_b32 v{X0}, 7, v{V_LANE}")
        a(f"v_min_u32 v{X2}, 31, v{V_LANE}")
        a(f"v_lshlrev_b32 v{X2}, 7, v{X2}")
        a(f"buffer_load_dword v{X1}, v{X0}, s[{SRD_X}:{SRD_X+3}], s{S_T1} offen")
        a(f"s_add_u32 s{S_T1}, s{S_T1}, 8192")
        a(f"s_cmp_lg_u32 s{S_W}, 7")
        a("s_cbranch_scc1 K1_TDONE")
        a(f"buffer_load_dword v{X0}, v{X2}, s[{SRD_X}:{SRD_X+3}], s{S_T1} offen")
        a.label("K1_TDONE")
    a(f"s_cmp_eq_u32 s{S_SUB}, 1")
    a("s_cselect_b64 s[18:19], s[14:15], s[12:13]")
    a(f"s_mul_i32 s{S_T2}, s{S_BLK}, 57344")
    a(f"s_mul_i32 s{S_T3}, s{S_BLK}, 43008")
    a(f"s_mul_i32 s{S_T0}, s{S_SUB}, 21504")
    a(f"s_add_u32 s{S_T3}, s{S_T3}, s{S_T0}")
    for q in range(3):
        sj = SRD_J + 4 * q
        if q < 2:
            a(f"s_add_u32 s{S_STO}, s{S_TN}, {2*q}")
        else:
            a(f"s_mov_b32 s{S_STO}, 4")
        a(f"s_mul_i32 s{S_M0+q}, s{S_STO}, {PR}")
        a(f"s_and_b32 s{S_T0}, s{S_W}, 3")
        a(f"s_lshl_b32 s{S_T0}, s{S_T0}, 10")
        a(f"s_add_u32 s{S_M0+q}, s{S_M0+q}, s{S_T0}")
        a(f"s_add_u32 s{S_T0}, s{S_5G}, s{S_STO}")
        a(f"s_lshl_b32 s{S_T1}, s{S_T0}, 6")
        a(f"s_add_u32 s{S_T1}, s{S_T1}, s{S_T2}")
        a(f"s_sub_u32 s{S_STO}, s{S_T0}, 56")
        a(f"s_mul_i32 s{S_STO}, s{S_STO}, 112")
        a(f"s_add_u32 s{S_STO}, s{S_STO}, s{S_T3}")
        a(f"s_cmp_lt_u32 s{S_T0}, 56")
        a(f"s_cselect_b64 s[{sj}:{sj+1}], s[18:19], s[8:9]")
        a(f"s_cselect_b32 s{sj+2}, 1605632, s30")
        a(f"s_mov_b32 s{sj+3}, 0x00020000")
        a(f"s_cselect_b32 s{S_SO+q}, s{S_T1}, s{S_STO}")
        a(f"s_cselect_b32 s{S_INC+q}, 114688, s31")
        a(f"s_cselect_b64 s[{S_M}:{S_M+1}], -1, 0")
        a(f"v_cndmask_b32 v{V_VOFF+q}, v{VQ}, v{VG}, s[{S_M}:{S_M+1}]")
    for j in range(5):
        a(f"s_add_u32 s{S_T0}, s{S_5G}, {j}")
        a(f"s_cmp_lt_u32 s{S_T0}, 56")
        a(f"s_cselect_b64 s[{S_M}:{S_M+1}], -1, 0")
        a(f"s_cselect_b32 s{S_T1}, 256, s29")
        a(f"v_cndmask_b32 v{V_TR+2*j}, v{TQ}, v{TG}, s[{S_M}:{S_M+1}]")
        a(f"v_add_u32 v{V_TR+2*j}, {j*PR}, v{V_TR+2*j}")
        a(f"v_add_u32 v{V_TR+2*j+1}, s{S_T1}, v{V_TR+2*j}")
    a(f"s_lshl_b32 s{S_T0}, s{S_W}, 4")
    a(f"s_lshl_b32 s{S_XM}, s{S_T0}, 7")
    a(f"s_lshl_b32 s{S_T1}, s{S_T}, 7")
    a(f"s_add_u32 s{S_T1}, s{S_T1}, s{S_T0}")
    a(f"s_mul_i32 s{S_XSO}, s{S_T1}, 896")

    SRD_PF, S_PF, V_PFD = 96, 81, 20
    a(f"s_lshr_b32 s{S_PF}, s2, 3")
    a(f"s_lshl_b32 s{S_PF}, s{S_PF}, 3")
    a(f"s_add_u32 s{S_PF}, s{S_PF}, s{S_W}")
    a(f"s_mov_b32 s{S_T1}, 401408")
    a(f"s_cmp_lt_u32 s{S_PF}, 196")
    a(f"s_cselect_b64 s[{SRD_PF}:{SRD_PF+1}], s[82:83], s[84:85]")
    a(f"s_cselect_b32 s{SRD_PF+2}, 1605632, s{S_T1}")
    a(f"s_mov_b32 s{SRD_PF+3}, 0x00020000")
    a(f"s_cselect_b32 s{S_T1}, 0, 196")
    a(f"s_sub_u32 s{S_PF}, s{S_PF}, s{S_T1}")
    a(f"s_lshl_b32 s{S_PF}, s{S_PF}, 13")
    vm = []
    def dma_w(i):
        slot = i % NSL
        for q in range(3):
            sj = SRD_J + 4 * q
            if q == 2:
                a(f"s_cmp_ge_u32 s{S_W}, 4")
                a(f"s_cbranch_scc1 K1_SW{i}")
            a(f"s_add_u32 m0, s{S_M0+q}, {slot*4096}")
            a("s_nop 0")
            a(f"buffer_load_dwordx4 v{V_VOFF+q}, s[{sj}:{sj+3}], s{S_SO+q} offen lds")
            a(f"s_add_u32 s{S_SO+q}, s{S_SO+q}, s{S_INC+q}")
            if q < 2: vm.append(("W", i))
        a.label(f"K1_SW{i}")
    def xdest(c):
        if False:
            a(f"s_lshr_b32 s{S_T0}, s{S_W}, 2")
            a(f"s_add_u32 s{S_T0}, s{S_T0}, {2*(c-2)}")
            a(f"s_mul_i32 s{S_T0}, s{S_T0}, {PR}")
            a(f"s_and_b32 s{S_T1}, s{S_XM}, 8191")
            a(f"s_add_u32 s{S_T0}, s{S_T0}, s{S_T1}")
            a(f"s_add_u32 s{S_T0}, s{S_T0}, 16384")
        else:
            a(f"s_add_u32 s{S_T0}, s{S_XM}, {XST + (c & 1)*16384}")
    def dma_x(c):
        xdest(c)
        a(f"s_add_u32 s{S_T1}, s{S_XSO}, {128*c}")
        a(f"s_mov_b32 m0, s{S_T0}")
        a(f"s_add_u32 s{S_T2}, s{S_T1}, {8*896}")
        a(f"buffer_load_dwordx4 v{V_X0}, s[{SRD_XN}:{SRD_XN+3}], s{S_T1} offen sc0 sc1 lds")
        a(f"s_add_u32 m0, s{S_T0}, 1024")
        a("s_nop 0")
        a(f"buffer_load_dwordx4 v{V_X1}, s[{SRD_XN}:{SRD_XN+3}], s{S_T2} offen sc0 sc1 lds")
        vm.extend([("X", c)] * 2)
    def xfrag_reads(c):
        if False:
            a(f"s_lshr_b32 s{S_T0}, s{S_TM}, 1")
            a(f"s_add_u32 s{S_T0}, s{S_T0}, {2*(c-2)}")
            a(f"s_mul_i32 s{S_T0}, s{S_T0}, {PR}")
            a(f"s_and_b32 s{S_T1}, s{S_TM}, 1")
            a(f"s_lshl_b32 s{S_T1}, s{S_T1}, 12")
            a(f"s_add_u32 s{S_T0}, s{S_T0}, s{S_T1}")
            a(f"s_add_u32 s{S_T0}, s{S_T0}, 16384")
        else:
            a(f"s_lshl_b32 s{S_T0}, s{S_TM}, 12")
            a(f"s_add_u32 s{S_T0}, s{S_T0}, {XST + (c & 1)*16384}")
        a(f"v_add_u32 v{V_X}, s{S_T0}, v{V_XR}")
        for sp in range(4):
            if sp: a(f"v_xor_b32 v{V_X+sp}, {32*sp}, v{V_X}")
        for sp in range(4):
            a(f"ds_read_b128 {vr(V_XN+4*(4*c+sp),4)}, v{V_X+sp}")
    def wait_tags(tags):
        idx = max(i for i, t in enumerate(vm) if t in tags)
        a(f"s_waitcnt vmcnt({len(vm)-1-idx})")

    for i in range(6): dma_w(i)
    a(f"s_cmp_lg_u32 s{S_W}, 0")
    a("s_cbranch_scc1 K1_XW")
    a(f"s_lshl_b32 s{S_T0}, s{S_T}, 7")
    a(f"s_add_u32 s{S_T0}, s{S_T0}, 0xF03000")
    a(f"v_mov_b32 v{V_X+1}, 0")
    a.label("K1_XP")
    a(f"buffer_load_dword v{V_X}, v{V_X+1}, s[{SRD_WS}:{SRD_WS+3}], s{S_T0} offen sc0 sc1")
    a("s_waitcnt vmcnt(0)")
    a(f"v_readfirstlane_b32 s{S_T1}, v{V_X}")
    a(f"s_cmp_ge_u32 s{S_T1}, 16")
    a("s_cbranch_scc1 K1_XW")
    a("s_sleep 2")
    a("s_branch K1_XP")
    a.label("K1_XW")
    a("s_barrier")
    st()
    dma_x(0); dma_x(1)
    wait_tags([("X", 0), ("X", 1), ("W", 0), ("W", 1)])
    st()
    a("s_barrier")
    xfrag_reads(0)
    xfrag_reads(1)
    a("s_waitcnt lgkmcnt(0)")
    st()

    def tr_reads(m):
        s, j = m // 5, m % 5
        i, b = s // 2, s % 2
        off = (i % NSL) * 4096 + b * 2048
        w = V_WF + 4 * (m % 4)
        a(f"ds_read_b64_tr_b16 {vr(w,2)}, v{V_TR+2*j} offset:{off}")
        a(f"ds_read_b64_tr_b16 {vr(w+2,2)}, v{V_TR+2*j+1} offset:{off}")

    lgk = []
    def emit_kstep(s, with_cs, extra_lds):
        for j in range(5):
            n = 5 * s + j
            m = n + PF
            if j == 0 and extra_lds is not None:
                extra_lds()
            if m < 140: tr_reads(m)
            younger = 2 * min(PF, 139 - n)
            if extra_lds is not None and j <= PF - 1:
                younger += 4
            a(f"s_waitcnt lgkmcnt({min(younger, 15)})")
            acc = vr(V_ACC + 16 * j, 16); wf = V_WF + 4 * (n % 4)
            a(f"v_mfma_f32_32x32x16_bf16 {acc}, {vr(wf,4)}, {vr(V_XN+4*s,4)}, {'0' if s == 0 else acc}")
            if with_cs:
                for r in range(4):
                    a(f"v_and_b32 v{V_U+(r&1)*2}, 0xffff0000, v{wf+r}")
                    a(f"v_lshlrev_b32 v{V_U+(r&1)*2+1}, 16, v{wf+r}")
                    a(f"v_add_f32 v{V_CS+j}, v{V_CS+j}, v{V_U+(r&1)*2}")
                    a(f"v_add_f32 v{V_CS+5+j}, v{V_CS+5+j}, v{V_U+(r&1)*2+1}")
    def emit_stats(s):
        for r in range(4):
            xr = V_XN + 4 * s + r
            hi, lo = V_U + (r & 1) * 2, V_U + (r & 1) * 2 + 1
            a(f"v_and_b32 v{hi}, 0xffff0000, v{xr}")
            a(f"v_lshlrev_b32 v{lo}, 16, v{xr}")
            a(f"v_add_f32 v{V_SUM}, v{V_SUM}, v{hi}")
            a(f"v_add_f32 v{V_SUM2}, v{V_SUM2}, v{lo}")
            a(f"v_fma_f32 v{V_SQ}, v{hi}, v{hi}, v{V_SQ}")
            a(f"v_fma_f32 v{V_SQ2}, v{lo}, v{lo}, v{V_SQ2}")

    for m in range(PF): tr_reads(m)
    for s in range(28):
        i = s // 2
        if s % 2 == 0 and s > 0:
            need = []
            if i + 1 <= 13: need.append(("W", i + 1))
            if i == 3: need += [("X", 2), ("X", 3)]
            if i == 6: need += [("X", 4), ("X", 5)]
            if i == 10: need.append(("X", 6))
            need = [t for t in need if t in vm]
            if need: wait_tags(need)
            a("s_barrier")
            st() if i in (1, 4, 8, 12) else None
            if i + 5 <= 13: dma_w(i + 5)
            if PFW and 2 <= i <= 9:
                a(f"s_add_u32 s{S_T0}, s{S_PF}, {(i-2)*1024}")
                a(f"buffer_load_dwordx4 {vr(V_PFD,4)}, v{V_L16}, s[{SRD_PF}:{SRD_PF+3}], s{S_T0} offen")
                vm.append(("P", i))
            if i == 1: dma_x(2); dma_x(3)
            if i == 4: dma_x(4); dma_x(5)
            if i == 7: dma_x(6)
        extra = None
        if s == 6: extra = lambda: xfrag_reads(2)
        if s == 7: extra = lambda: xfrag_reads(3)
        if s == 12: extra = lambda: xfrag_reads(4)
        if s == 13: extra = lambda: xfrag_reads(5)
        if s == 20: extra = lambda: xfrag_reads(6)
        if EXP == 0:
            a(f"s_cmp_eq_u32 s{S_TM}, {s & 3}")
            a(f"s_cbranch_scc1 K1_CS{s}")
            emit_kstep(s, False, extra)
            a(f"s_branch K1_CJ{s}")
            a.label(f"K1_CS{s}")
            emit_kstep(s, True, extra)
            a.label(f"K1_CJ{s}")
            a(f"s_cmp_lg_u32 s{S_TN}, {s & 1}")
            a(f"s_cbranch_scc1 K1_NS{s}")
            emit_stats(s)
            a.label(f"K1_NS{s}")
        elif EXP == 1:
            emit_kstep(s, False, extra)
        elif EXP == 2:
            emit_kstep(s, s % 4 == 0, extra)
            if s % 2 == 0: emit_stats(s)
        elif EXP == 3:
            emit_kstep(s, True, extra)
            emit_stats(s)
    st()
    V_PAD = V_X + 8
    for j in range(5):
        A = V_ACC + 16 * j
        T = V_XN + 64 + 8 * j
        a(f"s_add_u32 s{S_T0}, s{S_5G}, {j}")
        a(f"s_cmp_lt_u32 s{S_T0}, 56")
        a(f"s_cbranch_scc1 K1_EGU{j}")
        a(f"s_sub_u32 s{S_T0}, s{S_T0}, 56")
        a(f"s_lshl_b32 s{S_T0}, s{S_T0}, 1")
        a(f"s_add_u32 s{S_T0}, s{S_T0}, s{S_TN}")
        a(f"s_cmp_ge_u32 s{S_T0}, 32")
        a(f"s_cselect_b32 s{S_T1}, 0x3f80, 0")
        a(f"v_mov_b32 v{V_PAD}, s{S_T1}")
        a(f"s_lshl_b32 s{S_T0}, s{S_T0}, 6")
        a(f"s_add_u32 s{S_T0}, s{S_T0}, s{S_TOK}")
        a(f"s_lshl_b32 s{S_STO}, s{S_T0}, 11")
        a("s_nop 7")
        for e in range(8):
            a(f"v_cvt_pk_bf16_f32 v{T+e}, v{A+2*e}, v{A+2*e+1}")
        a(f"v_cndmask_b32 v{T+6}, v{T+6}, v{V_PAD}, s[{S_MHI}:{S_MHI+1}]")
        a(f"v_cndmask_b32 v{T+7}, v{T+7}, 0, s[{S_MHI}:{S_MHI+1}]")
        a(f"buffer_store_dwordx4 {vr(T,4)}, v{V_L16}, s[{SRD_WS}:{SRD_WS+3}], s{S_STO} offen{STF}")
        a(f"buffer_store_dwordx4 {vr(T+4,4)}, v{V_L16}, s[{SRD_WS}:{SRD_WS+3}], s{S_STO} offen offset:1024{STF}")
        a(f"s_branch K1_EJ{j}")
        a.label(f"K1_EGU{j}")
        a(f"s_lshl_b32 s{S_T0}, s{S_T0}, 1")
        a(f"s_add_u32 s{S_T0}, s{S_T0}, s{S_TN}")
        a(f"s_mul_i32 s{S_T1}, s{S_TOK}, 112")
        a(f"s_add_u32 s{S_T0}, s{S_T0}, s{S_T1}")
        a(f"s_lshl_b32 s{S_STO}, s{S_T0}, 10")
        a(f"s_add_u32 s{S_STO}, s{S_STO}, {WS_H}")
        a("s_nop 9")
        for e in range(8):
            a(f"v_mul_f32 v{A+e}, v{A+e}, v{A+8+e}")
        for e in range(4):
            a(f"v_cvt_pk_bf16_f32 v{T+e}, v{A+2*e}, v{A+2*e+1}")
        a(f"buffer_store_dwordx4 {vr(T,4)}, v{V_L16}, s[{SRD_WS}:{SRD_WS+3}], s{S_STO} offen{STF}")
        a.label(f"K1_EJ{j}")
    a("s_waitcnt vmcnt(0)")
    a("s_barrier")
    a(f"s_cmp_lg_u32 s{S_W}, 0")
    a("s_cbranch_scc1 K1_PUBD")
    a(f"s_lshl_b32 s{S_T0}, s{S_T}, 7")
    a(f"s_add_u32 s{S_T0}, s{S_T0}, 0xF02000")
    a(f"v_mov_b32 v{V_X}, 1")
    a(f"v_mov_b32 v{V_X+1}, 0")
    a("s_mov_b64 exec, 1")
    a(f"s_cmp_gt_u32 s{S_G}, 11")
    a("s_cbranch_scc1 K1_NOH")
    a(f"buffer_atomic_add v{V_X}, v{V_X+1}, s[{SRD_WS}:{SRD_WS+3}], s{S_T0} offen sc1")
    a.label("K1_NOH")
    a(f"s_cmp_lt_u32 s{S_G}, 11")
    a("s_cbranch_scc1 K1_NOQ")
    a(f"s_add_u32 s{S_T0}, s{S_T0}, 2048")
    a(f"buffer_atomic_add v{V_X}, v{V_X+1}, s[{SRD_WS}:{SRD_WS+3}], s{S_T0} offen sc1")
    a.label("K1_NOQ")
    a("s_mov_b64 exec, -1")
    a.label("K1_PUBD")
```

```python
import gen2, gen6, gen8, sys
gen6.P1 = gen8.gen_k1
from gen import build, NAME
class St3:
    cnt = [1]
    wave = 0
    keep = None
    def __init__(self, a, on, **kw):
        self.a = a; self.on = True; self.vreg = 252; self._n = 0
    @property
    def n(self): return self._n
    @n.setter
    def n(self, v): self._n = v
    def __call__(self):
        idx = St3.calls[0]; St3.calls[0] += 1
        if idx not in St3.keep: return
        i = St3.cnt[0]; St3.cnt[0] += 1
        self.a("s_memtime s[100:101]")
        self.a("s_waitcnt lgkmcnt(0)")
        self.a(f"v_writelane_b32 v252, s100, {i}")
    def dump(self, *a_): pass
def build_diag(path, wave, keep):
    St3.cnt = [1]; St3.calls = [0]; St3.keep = keep
    gen2.Stamper = St3; gen6.Stamper = St3; gen8.Stamper = St3
    gen2.STAMP = False; gen6.STAMP = False; gen2.STF = ' sc0 sc1'
    def g(a):
        gen6.gen_fused(a)
        assert a.lines[-1] == "s_endpgm"
        a.lines.pop()
        a("s_waitcnt vmcnt(0)")
        a("s_memtime s[100:101]")
        a("s_waitcnt lgkmcnt(0)")
        a(f"v_writelane_b32 v252, s100, 15")
        a("s_load_dwordx2 s[16:17], s[0:1], 64")
        a("s_waitcnt lgkmcnt(0)")
        a("s_mov_b32 s18, 256")
        a("s_mov_b32 s19, 0x00020000")
        a("s_cmp_lg_u32 s2, 37")
        a("s_cbranch_scc1 DG_END")
        a(f"s_cmp_lg_u32 s97, {wave}")
        a("s_cbranch_scc1 DG_END")
        a("v_and_b32 v241, 63, v0")
        a("v_lshlrev_b32 v241, 2, v241")
        a("v_cmp_gt_u32 vcc, 64, v241")
        a("s_and_saveexec_b64 s[98:99], vcc")
        a("v_cmp_lt_u32 vcc, 0, v241")
        a("s_and_b64 exec, exec, vcc")
        a("buffer_store_dword v252, v241, s[16:19], 0 offen")
        a("DG_END:")
        a("s_endpgm")
    build([(NAME + "_kernel", g, 256, 512, 163840, 256, 102)], path)
    print(path, "total st() calls", St3.calls[0], "kept", St3.cnt[0] - 1)


build_diag("v_d0.s", 0, {0, 2, 3, 4, 6, 9, 10, 14, 15, 16, 17, 18, 19})
build_diag("v_d4.s", 4, {0, 2, 3, 4, 6, 9, 10, 11, 12, 13})
```

```python
import sys
from asmlib import Asm
from gen import vr, sr, srd, kernel_desc, HEADER, build, NAME, WS_QKV, WS_H, WS_O, WS_SIZE

class Stamper:
    def __init__(self, a, on, base=64, vtmp=(250, 251)):
        self.a, self.on, self.n, self.base = a, on, 0, base
        self.vreg = 252
    def __call__(self):
        if not self.on: return
        self.a(f"s_memtime s[100:101]")
        self.a("s_waitcnt lgkmcnt(0)")
        self.a(f"v_writelane_b32 v{self.vreg}, s100, {self.n}")
        self.n += 1
    def dump(self, wg, swave, v0, v1, tag):
        if not self.on: return
        a = self.a
        a("s_load_dwordx2 s[16:17], s[0:1], 64")
        a("s_waitcnt lgkmcnt(0)")
        a("s_mov_b32 s18, 65536")
        a("s_mov_b32 s19, 0x00020000")
        a(f"s_cmp_lg_u32 s2, {wg}")
        a(f"s_cbranch_scc1 NOST_{tag}")
        a(f"s_lshl_b32 s15, s{swave}, 7")
        a(f"v_and_b32 v{v1}, 63, v0")
        a(f"v_lshlrev_b32 v{v1}, 2, v{v1}")
        a(f"v_cmp_gt_u32 vcc, 128, v{v1}")
        a(f"s_and_saveexec_b64 s[98:99], vcc")
        a(f"buffer_store_dword v{self.vreg}, v{v1}, s[16:19], s15 offen")
        a(f"s_mov_b64 exec, s[98:99]")
        a(f"NOST_{tag}:")

STAMP = False
TOUCH = False
FUSED = False
XF = 0
PFW = True
ROT = True
LIM = True
RT = False
STF = ''

def gen_k1(a):
    st = Stamper(a, STAMP)
    PF = 3
    V_LANE, V_L16 = 1, 2
    V_VOFF = 3
    V_TR = 8
    V_WF = 20
    V_ACC = 36
    V_XN = 116
    V_T = 228
    V_PAD = 236
    V_X = 238
    S_W, S_TM, S_TN, S_T, S_G = 3, 33, 34, 35, 36
    S_5G, S_TOK, S_SUB, S_BLK = 37, 38, 39, 32
    S_MHI = 40
    S_M = 42
    S_SO = 44
    S_INC = 49
    S_T0, S_T1, S_T2, S_T3 = 54, 55, 56, 57
    S_M0 = 58
    S_STO = 59
    SRD_X, SRD_WS = 4, 20
    SRD_J = 60
    if STAMP: st.base = 80

    a("s_cmp_ge_u32 s2, 256")
    a("s_cbranch_scc1 K1_END")
    if RT: a("s_memrealtime s[98:99]")
    st()
    a("s_load_dwordx2 s[16:17], s[0:1], 0")
    a("s_load_dwordx2 s[8:9], s[0:1], 8")
    a("s_load_dwordx4 s[12:15], s[0:1], 32")
    a("s_load_dwordx2 s[10:11], s[0:1], 72")
    a("s_load_dwordx2 s[94:95], s[0:1], 48")
    a("s_load_dwordx2 s[96:97], s[0:1], 16")
    a("s_mov_b32 s93, 401408")
    a(f"v_and_b32 v{V_LANE}, 63, v0")
    a(f"v_lshrrev_b32 v{V_X}, 6, v0")
    a(f"v_lshlrev_b32 v{V_L16}, 4, v{V_LANE}")
    a(f"v_readfirstlane_b32 s{S_W}, v{V_X}")
    a(f"s_and_b32 s{S_T0}, s2, 7")
    a(f"s_lshr_b32 s{S_T1}, s2, 3")
    a(f"s_and_b32 s{S_T}, s{S_T0}, 1")
    a(f"s_lshl_b32 s{S_T}, s{S_T}, 3")
    a(f"s_and_b32 s{S_T2}, s{S_T1}, 7")
    a(f"s_add_u32 s{S_T}, s{S_T}, s{S_T2}")
    a(f"s_lshr_b32 s{S_G}, s{S_T0}, 1")
    a(f"s_lshl_b32 s{S_G}, s{S_G}, 2")
    a(f"s_lshr_b32 s{S_T2}, s{S_T1}, 3")
    a(f"s_add_u32 s{S_G}, s{S_G}, s{S_T2}")
    a(f"s_mul_i32 s{S_5G}, s{S_G}, 5")
    a(f"s_and_b32 s{S_TM}, s{S_W}, 3")
    a(f"s_lshr_b32 s{S_TN}, s{S_W}, 2")
    a(f"s_and_b32 s{S_SUB}, s{S_W}, 1")
    a(f"s_lshr_b32 s{S_BLK}, s{S_W}, 1")
    S_WR = 31 + 55
    a(f"s_and_b32 s{S_WR}, s{S_G}, {3 if ROT else 0}")
    a(f"s_lshl_b32 s{S_WR}, s{S_WR}, 1")
    a(f"s_add_u32 s{S_WR}, s{S_WR}, s{S_W}")
    a(f"s_and_b32 s{S_WR}, s{S_WR}, 7")
    a(f"s_lshl_b32 s{S_TOK}, s{S_T}, 2")
    a(f"s_add_u32 s{S_TOK}, s{S_TOK}, s{S_TM}")
    a(f"s_mov_b32 s{S_MHI}, 0")
    a(f"s_mov_b32 s{S_MHI+1}, -1")
    R, C, MH, H, MG, X0, X1, X2, TQ, TG, VQ, VG = [V_X + i for i in range(12)]
    a(f"v_bfe_u32 v{R}, v{V_LANE}, 2, 2")
    a(f"v_and_b32 v{C}, 3, v{V_LANE}")
    a(f"v_bfe_u32 v{MH}, v{V_LANE}, 4, 1")
    a(f"v_lshrrev_b32 v{H}, 5, v{V_LANE}")
    a(f"v_lshl_add_u32 v{MG}, v{MH}, 2, v{C}")
    a(f"v_and_b32 v{X0}, 1, v{MG}")
    a(f"v_lshlrev_b32 v{X0}, 2, v{X0}")
    a(f"v_lshrrev_b32 v{X1}, 1, v{MG}")
    a(f"v_or_b32 v{X0}, v{X0}, v{X1}")
    a(f"v_min_u32 v{X0}, 6, v{X0}")
    a(f"s_mul_i32 s{S_T0}, s{S_TN}, 56")
    a(f"v_lshlrev_b32 v{X0}, 3, v{X0}")
    a(f"v_add_u32 v{X0}, s{S_T0}, v{X0}")
    a(f"v_lshrrev_b32 v{X1}, 4, v{X0}")
    a(f"v_bfe_u32 v{X2}, v{R}, 1, 1")
    a(f"v_lshlrev_b32 v{X2}, 2, v{X2}")
    a(f"v_xor_b32 v{X1}, v{X1}, v{X2}")
    a(f"v_and_b32 v{X0}, 15, v{X0}")
    a(f"v_lshl_add_u32 v{X0}, v{X1}, 4, v{X0}")
    a(f"v_lshl_add_u32 v{X2}, v{H}, 3, v{R}")
    a(f"v_lshl_add_u32 v{TQ}, v{X2}, 7, v{X0}")
    a(f"s_lshl_b32 s{S_T0}, s{S_TN}, 1")
    a(f"v_and_b32 v{X0}, 1, v{C}")
    a(f"v_add_u32 v{X0}, s{S_T0}, v{X0}")
    a(f"v_lshlrev_b32 v{X1}, 1, v{MH}")
    a(f"v_xor_b32 v{X0}, v{X0}, v{X1}")
    a(f"v_lshlrev_b32 v{X0}, 4, v{X0}")
    a(f"v_lshrrev_b32 v{X1}, 1, v{C}")
    a(f"v_lshl_add_u32 v{X0}, v{X1}, 3, v{X0}")
    a(f"v_lshl_add_u32 v{X0}, v{X2}, 6, v{X0}")
    a(f"v_lshl_add_u32 v{TG}, v{MH}, 10, v{X0}")
    a(f"v_lshrrev_b32 v{X0}, 3, v{V_LANE}")
    a(f"v_and_b32 v{X1}, 7, v{V_LANE}")
    a(f"v_bfe_u32 v{X2}, v{V_LANE}, 4, 1")
    a(f"v_lshlrev_b32 v{X2}, 2, v{X2}")
    a(f"v_xor_b32 v{X1}, v{X1}, v{X2}")
    a(f"v_lshlrev_b32 v{X1}, 4, v{X1}")
    a(f"s_movk_i32 s{S_T0}, 2688")
    a(f"v_mad_u32_u24 v{VQ}, v{X0}, s{S_T0}, v{X1}")
    a(f"v_lshrrev_b32 v{X0}, 2, v{V_LANE}")
    a(f"v_lshlrev_b32 v{X1}, 4, v{C}")
    a(f"s_movk_i32 s{S_T0}, 3584")
    a(f"v_mad_u32_u24 v{VG}, v{X0}, s{S_T0}, v{X1}")
    a(f"s_lshl_b32 s{S_T0}, s{S_SUB}, 5")
    a(f"v_xor_b32 v{VG}, s{S_T0}, v{VG}")
    V_XG, V_XW, V_XR = 20, 21, 22
    a(f"v_lshrrev_b32 v{X0}, 2, v{V_LANE}")
    a(f"s_movk_i32 s{S_T0}, 896")
    a(f"v_lshlrev_b32 v{X1}, 4, v{C}")
    a(f"v_mad_u32_u24 v{V_XG}, v{X0}, s{S_T0}, v{X1}")
    a(f"s_and_b32 s{S_T1}, s{S_WR}, 1")
    a(f"s_lshl_b32 s{S_T1}, s{S_T1}, 4")
    a(f"v_add_u32 v{X0}, s{S_T1}, v{X0}")
    a(f"s_movk_i32 s{S_T0}, 464")
    a(f"v_mad_u32_u24 v{V_XW}, v{X0}, s{S_T0}, v{X1}")
    a(f"s_lshr_b32 s{S_T1}, s{S_WR}, 1")
    a(f"s_lshl_b32 s{S_T1}, s{S_T1}, 15")
    a(f"s_add_u32 s{S_T1}, s{S_T1}, 16384")
    a(f"v_add_u32 v{V_XW}, s{S_T1}, v{V_XW}")
    a(f"v_and_b32 v{X0}, 31, v{V_LANE}")
    a(f"v_lshlrev_b32 v{X1}, 4, v{H}")
    a(f"v_mad_u32_u24 v{V_XR}, v{X0}, s{S_T0}, v{X1}")
    a(f"s_lshl_b32 s{S_T1}, s{S_TM}, 15")
    a(f"s_add_u32 s{S_T1}, s{S_T1}, 16384")
    a(f"v_add_u32 v{V_XR}, s{S_T1}, v{V_XR}")
    a(f"s_lshl_b32 s{S_M0}, s{S_W}, 10")
    a("s_waitcnt lgkmcnt(0)")
    st()
    srd(a, SRD_X, 16, 1835008)
    srd(a, SRD_WS, 10, WS_SIZE)
    a("s_cmp_lg_u32 s2, 0")
    a("s_cbranch_scc1 K1_NOZ")
    a(f"s_cmp_lg_u32 s{S_W}, 0")
    a("s_cbranch_scc1 K1_NOZ")
    a(f"v_lshlrev_b32 v{X0}, 7, v{V_LANE}")
    a(f"v_mov_b32 v{X1}, 0")
    a(f"s_mov_b32 s{S_T0}, 0xF00000")
    a(f"buffer_store_dword v{X1}, v{X0}, s[{SRD_WS}:{SRD_WS+3}], s{S_T0} offen sc0 sc1")
    if FUSED:
        a(f"s_mov_b32 s{S_T0}, 0xF02000")
        a(f"buffer_store_dword v{X1}, v{X0}, s[{SRD_WS}:{SRD_WS+3}], s{S_T0} offen sc0 sc1")
        a("s_load_dwordx2 s[88:89], s[0:1], 64")
        a("s_waitcnt vmcnt(0) lgkmcnt(0)")
        a("s_mov_b32 s90, 256")
        a("s_mov_b32 s91, 0x00020000")
        a(f"v_mov_b32 v{X0}, 0")
        a(f"v_mov_b32 v{X1}, 1")
        a("s_mov_b64 exec, 1")
        a(f"buffer_store_dword v{X1}, v{X0}, s[88:91], 0 offen sc0 sc1")
        a("s_mov_b64 exec, -1")
    a.label("K1_NOZ")
    if TOUCH:
        SRD_TMP = 84
        a(f"s_cmp_ge_u32 s{S_W}, 5")
        a("s_cbranch_scc1 K1_TX")
        a(f"v_min_u32 v{X0}, 55, v{V_LANE}")
        a(f"s_and_b32 s{S_T0}, s{S_T}, 7")
        a(f"s_mul_i32 s{S_T0}, s{S_T0}, 56")
        a(f"v_add_u32 v{X0}, s{S_T0}, v{X0}")
        a(f"s_add_u32 s{S_T1}, s{S_5G}, s{S_W}")
        a(f"s_cmp_lt_u32 s{S_T1}, 56")
        a("s_cbranch_scc0 K1_TQ")
        a(f"s_movk_i32 s{S_T2}, 3584")
        a(f"v_mul_u32_u24 v{X0}, s{S_T2}, v{X0}")
        a(f"s_lshl_b32 s{S_T1}, s{S_T1}, 6")
        srd(a, SRD_TMP, 12, 1605632)
        a(f"buffer_load_dword v{X1}, v{X0}, s[{SRD_TMP}:{SRD_TMP+3}], s{S_T1} offen")
        a(f"s_mov_b32 s{SRD_TMP}, s14")
        a(f"s_mov_b32 s{SRD_TMP+1}, s15")
        a(f"buffer_load_dword v{X2}, v{X0}, s[{SRD_TMP}:{SRD_TMP+3}], s{S_T1} offen")
        a("s_branch K1_TX")
        a.label("K1_TQ")
        a(f"s_movk_i32 s{S_T2}, 2688")
        a(f"v_mul_u32_u24 v{X0}, s{S_T2}, v{X0}")
        a(f"s_sub_u32 s{S_T1}, s{S_T1}, 56")
        a(f"s_mul_i32 s{S_T1}, s{S_T1}, 112")
        srd(a, SRD_TMP, 8, 1204224)
        a(f"buffer_load_dword v{X1}, v{X0}, s[{SRD_TMP}:{SRD_TMP+3}], s{S_T1} offen")
        a(f"buffer_load_dword v{X2}, v{X0}, s[{SRD_TMP}:{SRD_TMP+3}], s{S_T1} offen offset:108")
        a.label("K1_TX")
    XR = V_XN
    a(f"s_lshl_b32 s{S_T0}, s{S_WR}, 4")
    a(f"s_lshl_b32 s{S_T1}, s{S_T}, 7")
    a(f"s_add_u32 s{S_T1}, s{S_T1}, s{S_T0}")
    a(f"s_mul_i32 s{S_T1}, s{S_T1}, 896")
    for i in range(14):
        a(f"buffer_load_dwordx4 {vr(XR+4*i,4)}, v{V_XG}, s[{SRD_X}:{SRD_X+3}], s{S_T1} offen offset:{64*i}")
    a(f"s_cmp_eq_u32 s{S_SUB}, 1")
    a("s_cselect_b64 s[18:19], s[14:15], s[12:13]")
    a(f"s_mul_i32 s{S_T2}, s{S_BLK}, 57344")
    a(f"s_mul_i32 s{S_T3}, s{S_BLK}, 43008")
    a(f"s_mul_i32 s{S_T0}, s{S_SUB}, 21504")
    a(f"s_add_u32 s{S_T3}, s{S_T3}, s{S_T0}")
    a("s_mov_b32 s30, 1204224")
    a("s_mov_b32 s31, 172032")
    a("s_mov_b32 s29, 512")
    for j in range(5):
        sj = SRD_J + 4 * j
        a(f"s_add_u32 s{S_T0}, s{S_5G}, {j}")
        a(f"s_lshl_b32 s{S_T1}, s{S_T0}, 6")
        a(f"s_add_u32 s{S_T1}, s{S_T1}, s{S_T2}")
        a(f"s_sub_u32 s{S_STO}, s{S_T0}, 56")
        a(f"s_mul_i32 s{S_STO}, s{S_STO}, 112")
        a(f"s_add_u32 s{S_STO}, s{S_STO}, s{S_T3}")
        a(f"s_cmp_lt_u32 s{S_T0}, 56")
        a(f"s_cselect_b64 s[{sj}:{sj+1}], s[18:19], s[8:9]")
        a(f"s_cselect_b32 s{sj+2}, 1605632, s30")
        a(f"s_mov_b32 s{sj+3}, 0x00020000")
        a(f"s_cselect_b32 s{S_SO+j}, s{S_T1}, s{S_STO}")
        a(f"s_cselect_b32 s{S_INC+j}, 229376, s31")
        a(f"s_cselect_b64 s[{S_M}:{S_M+1}], -1, 0")
        a(f"v_cndmask_b32 v{V_VOFF+j}, v{VQ}, v{VG}, s[{S_M}:{S_M+1}]")
        a(f"v_cndmask_b32 v{V_TR+2*j}, v{TQ}, v{TG}, s[{S_M}:{S_M+1}]")
        a(f"s_cselect_b32 s{S_T1}, 256, s29")
        a(f"v_add_u32 v{V_TR+2*j}, {j*32768}, v{V_TR+2*j}")
        a(f"v_add_u32 v{V_TR+2*j+1}, s{S_T1}, v{V_TR+2*j}")
    SRD_PF, S_PF = 88, 92
    a("s_lshr_b32 s92, s2, 3")
    a("s_lshl_b32 s92, s92, 3")
    a(f"s_add_u32 s92, s92, s{S_W}")
    a("s_cmp_lt_u32 s92, 196")
    a("s_cselect_b64 s[88:89], s[94:95], s[96:97]")
    a("s_cselect_b32 s90, 1605632, s93")
    a("s_mov_b32 s91, 0x00020000")
    a("s_cselect_b32 s93, 0, 196")
    a("s_sub_u32 s92, s92, s93")
    a("s_lshl_b32 s92, s92, 13")
    a("s_barrier")

    def dma_group(g):
        slot = g % 4
        for j in range(5):
            sj = SRD_J + 4 * j
            a(f"s_add_u32 m0, s{S_M0}, {j*32768 + slot*8192}")
            a("s_nop 0")
            a(f"buffer_load_dwordx4 v{V_VOFF+j}, s[{sj}:{sj+3}], s{S_SO+j} offen lds")
            a(f"s_add_u32 s{S_SO+j}, s{S_SO+j}, s{S_INC+j}")
    if XF == 0:
        dma_group(0); dma_group(1)
    NY = 10 if XF == 0 else 0
    if XF == 2:
        a(f"s_cmp_lt_u32 s{S_W}, 4")
        a("s_cbranch_scc1 K1_NP")
        a("s_setprio 1")
        a.label("K1_NP")
    a(f"s_waitcnt vmcnt({13 + NY})")
    st()
    SUM = [V_X + 0, V_X + 1]; SQ = [V_X + 2, V_X + 3]
    for r in SUM + SQ: a(f"v_mov_b32 v{r}, 0")
    a(f"s_mov_b32 s{S_T0}, 0x3f803f80")
    for i in range(56):
        a(f"v_dot2_f32_bf16 v{SUM[i&1]}, v{XR+i}, s{S_T0}, v{SUM[i&1]}")
        a(f"v_dot2_f32_bf16 v{SQ[i&1]}, v{XR+i}, v{XR+i}, v{SQ[i&1]}")
        if i % 4 == 3 and i < 55: a(f"s_waitcnt vmcnt({NY + 12 - i//4})")
    if XF != 0:
        dma_group(0); dma_group(1)
    a(f"v_add_f32 v{SUM[0]}, v{SUM[0]}, v{SUM[1]}")
    a(f"v_add_f32 v{SQ[0]}, v{SQ[0]}, v{SQ[1]}")
    for perm in ("[1,0,3,2]", "[2,3,0,1]"):
        a(f"v_add_f32_dpp v{SUM[0]}, v{SUM[0]}, v{SUM[0]} quad_perm:{perm} row_mask:0xf bank_mask:0xf")
        a(f"v_add_f32_dpp v{SQ[0]}, v{SQ[0]}, v{SQ[0]} quad_perm:{perm} row_mask:0xf bank_mask:0xf")
    M, VAR, RR, CC = V_X + 4, V_X + 5, V_X + 6, V_X + 7
    a(f"v_mul_f32 v{M}, 0x3b124925, v{SUM[0]}")
    a(f"v_mul_f32 v{VAR}, 0x3b124925, v{SQ[0]}")
    a(f"v_fma_f32 v{VAR}, -v{M}, v{M}, v{VAR}")
    a(f"v_max_f32 v{VAR}, 0, v{VAR}")
    def rbf(r):
        a(f"v_cvt_pk_bf16_f32 v{r}, v{r}, v{r}")
        a(f"v_lshlrev_b32 v{r}, 16, v{r}")
    rbf(M); rbf(VAR)
    a(f"v_add_f32 v{VAR}, 0x3727c5ac, v{VAR}")
    rbf(VAR)
    a(f"v_sqrt_f32 v{VAR}, v{VAR}")
    rbf(VAR)
    a(f"v_rcp_f32 v{RR}, v{VAR}")
    a(f"v_mul_f32 v{CC}, v{M}, v{RR}")
    a(f"v_sub_f32 v{CC}, 0, v{CC}")
    XO = V_XN + 56
    TU = V_ACC
    for i0 in range(0, 56, 8):
        for i in range(8): a(f"v_lshlrev_b32 v{TU+2*i}, 16, v{XR+i0+i}")
        for i in range(8): a(f"v_and_b32 v{TU+2*i+1}, 0xffff0000, v{XR+i0+i}")
        for i in range(16): a(f"v_fma_f32 v{TU+i}, v{TU+i}, v{RR}, v{CC}")
        for i in range(8): a(f"v_cvt_pk_bf16_f32 v{XO+i0+i}, v{TU+2*i}, v{TU+2*i+1}")
        if i0 == 24:
            for ii in range(7):
                a(f"ds_write_b128 v{V_XW}, {vr(XO+4*ii,4)} offset:{64*ii}")
    st()
    a("s_waitcnt lgkmcnt(0)")
    a("s_barrier")
    for s_ in range(14):
        a(f"ds_read_b128 {vr(V_XN+4*s_,4)}, v{V_XR} offset:{32*s_}")
    a("s_waitcnt lgkmcnt(0)")
    a("s_barrier")
    for i in range(7):
        a(f"ds_write_b128 v{V_XW}, {vr(XO+4*(7+i),4)} offset:{64*i}")
    a("s_waitcnt lgkmcnt(0)")
    a("s_barrier")
    for s_ in range(14):
        a(f"ds_read_b128 {vr(V_XN+4*(14+s_),4)}, v{V_XR} offset:{32*s_}")
    a("s_waitcnt lgkmcnt(0) vmcnt(0)")
    st()
    a("s_barrier")
    st()
    dma_group(2); dma_group(3)

    def tr_reads(m):
        s, j = m // 5, m % 5
        g, b = s // 4, s % 4
        off = (g % 4) * 8192 + b * 2048
        w = V_WF + 4 * (m % 4)
        a(f"ds_read_b64_tr_b16 {vr(w,2)}, v{V_TR+2*j} offset:{off}")
        a(f"ds_read_b64_tr_b16 {vr(w+2,2)}, v{V_TR+2*j+1} offset:{off}")

    vm = [("G", 2)] * 5 + [("G", 3)] * 5
    npf = [0]
    def prefetch(k):
        for _ in range(k):
            i = npf[0]
            if i >= 8: return
            npf[0] += 1
            a(f"s_add_u32 s{S_T0}, s{S_PF}, {i*1024}")
            a(f"buffer_load_dwordx4 {vr(V_T + 4*(i&1),4)}, v{V_L16}, s[{SRD_PF}:{SRD_PF+3}], s{S_T0} offen")
            vm.append(("P", i))
    issued = [0]
    limit = [39]
    def fill(n):
        while issued[0] <= min(n + PF, limit[0], 139):
            tr_reads(issued[0]); issued[0] += 1
    fill(0 - 1 + 0)
    for n in range(140):
        s, j = n // 5, n % 5
        g = s // 4
        if n % 20 == 0 and n > 0:
            want = g + 1 if (g + 1 <= 6 and (g >= 2 or not LIM)) else g
            if ("G", want) in vm:
                idx = max(i for i, t in enumerate(vm) if t == ("G", want))
                a(f"s_waitcnt vmcnt({len(vm)-1-idx})")
            a("s_barrier")
            st()
            limit[0] = max(limit[0], 20 * want + 19)
            if g + 3 <= 6:
                dma_group(g + 3); vm += [("G", g + 3)] * 5
            if PFW: prefetch(2)
        fill(n)
        a(f"s_waitcnt lgkmcnt({2*(issued[0]-1-n)})")
        acc = vr(V_ACC + 16 * j, 16)
        a(f"v_mfma_f32_32x32x16_bf16 {acc}, {vr(V_WF+4*(n%4),4)}, {vr(V_XN+4*s,4)}, {'0' if s == 0 else acc}")
    if PFW: a("s_waitcnt vmcnt(0)")
    st()
    for j in range(5):
        A = V_ACC + 16 * j
        T = V_T if j % 2 == 0 else V_WF
        a(f"s_add_u32 s{S_T0}, s{S_5G}, {j}")
        a(f"s_cmp_lt_u32 s{S_T0}, 56")
        a(f"s_cbranch_scc1 K1_EGU{j}")
        a(f"s_sub_u32 s{S_T0}, s{S_T0}, 56")
        a(f"s_lshl_b32 s{S_T0}, s{S_T0}, 1")
        a(f"s_add_u32 s{S_T0}, s{S_T0}, s{S_TN}")
        a(f"s_cmp_ge_u32 s{S_T0}, 32")
        a(f"s_cselect_b32 s{S_T1}, 0x3f80, 0")
        a(f"v_mov_b32 v{V_PAD}, s{S_T1}")
        a(f"s_lshl_b32 s{S_T0}, s{S_T0}, 6")
        a(f"s_add_u32 s{S_T0}, s{S_T0}, s{S_TOK}")
        a(f"s_lshl_b32 s{S_STO}, s{S_T0}, 11")
        a("s_nop 4")
        for e in range(8):
            a(f"v_cvt_pk_bf16_f32 v{T+e}, v{A+2*e}, v{A+2*e+1}")
        a(f"v_cndmask_b32 v{T+6}, v{T+6}, v{V_PAD}, s[{S_MHI}:{S_MHI+1}]")
        a(f"v_cndmask_b32 v{T+7}, v{T+7}, 0, s[{S_MHI}:{S_MHI+1}]")
        a(f"buffer_store_dwordx4 {vr(T,4)}, v{V_L16}, s[{SRD_WS}:{SRD_WS+3}], s{S_STO} offen{STF}")
        a(f"buffer_store_dwordx4 {vr(T+4,4)}, v{V_L16}, s[{SRD_WS}:{SRD_WS+3}], s{S_STO} offen offset:1024{STF}")
        a(f"s_branch K1_EJ{j}")
        a.label(f"K1_EGU{j}")
        a(f"s_lshl_b32 s{S_T0}, s{S_T0}, 1")
        a(f"s_add_u32 s{S_T0}, s{S_T0}, s{S_TN}")
        a(f"s_mul_i32 s{S_T1}, s{S_TOK}, 112")
        a(f"s_add_u32 s{S_T0}, s{S_T0}, s{S_T1}")
        a(f"s_lshl_b32 s{S_STO}, s{S_T0}, 10")
        a(f"s_add_u32 s{S_STO}, s{S_STO}, {WS_H}")
        a("s_nop 6")
        for e in range(8):
            a(f"v_mul_f32 v{A+e}, v{A+e}, v{A+8+e}")
        for e in range(4):
            a(f"v_cvt_pk_bf16_f32 v{T+e}, v{A+2*e}, v{A+2*e+1}")
        a(f"buffer_store_dwordx4 {vr(T,4)}, v{V_L16}, s[{SRD_WS}:{SRD_WS+3}], s{S_STO} offen{STF}")
        a.label(f"K1_EJ{j}")
    if RT:
        a("s_waitcnt vmcnt(0)")
        a("s_memrealtime s[100:101]")
        a("s_waitcnt lgkmcnt(0)")
        a(f"s_cmp_lg_u32 s{S_W}, 0")
        a("s_cbranch_scc1 K1_END")
        a("v_mov_b32 v240, s98")
        a("v_mov_b32 v241, s100")
        a("s_lshl_b32 s15, s2, 3")
        a("s_add_u32 s15, s15, 0x4000000")
        a("v_mov_b32 v242, 0")
        a(f"buffer_store_dwordx2 v[240:241], v242, s[{SRD_WS}:{SRD_WS+3}], s15 offen")
    if STAMP:
        a("s_waitcnt vmcnt(0)")
        st()
        st.dump(37, S_W, 240, 241, "k1")
    if FUSED:
        a("s_waitcnt vmcnt(0)")
        a("s_barrier")
        a(f"s_cmp_lg_u32 s{S_W}, 0")
        a("s_cbranch_scc1 K1_PUBD")
        a("s_load_dwordx2 s[88:89], s[0:1], 64")
        a("s_waitcnt lgkmcnt(0)")
        a("s_mov_b32 s90, 256")
        a("s_mov_b32 s91, 0x00020000")
        a("v_mov_b32 v241, 0")
        a.label("K1_INITP")
        a("buffer_load_dword v240, v241, s[88:91], 0 offen sc0 sc1")
        a("s_waitcnt vmcnt(0)")
        a("v_readfirstlane_b32 s92, v240")
        a("s_cmp_lg_u32 s92, 0")
        a("s_cbranch_scc1 K1_INITOK")
        a("s_sleep 8")
        a("s_branch K1_INITP")
        a.label("K1_INITOK")
        a(f"s_lshl_b32 s92, s{S_T}, 7")
        a("s_add_u32 s92, s92, 0xF02000")
        a("v_mov_b32 v240, 1")
        a("s_mov_b64 exec, 1")
        a(f"s_cmp_gt_u32 s{S_G}, 11")
        a("s_cbranch_scc1 K1_NOH")
        a(f"buffer_atomic_add v240, v241, s[{SRD_WS}:{SRD_WS+3}], s92 offen sc1")
        a.label("K1_NOH")
        a(f"s_cmp_lt_u32 s{S_G}, 11")
        a("s_cbranch_scc1 K1_NOQ")
        a("s_add_u32 s92, s92, 2048")
        a(f"buffer_atomic_add v240, v241, s[{SRD_WS}:{SRD_WS+3}], s92 offen sc1")
        a.label("K1_NOQ")
        a("s_mov_b64 exec, -1")
        a.label("K1_PUBD")
        return
    a.label("K1_END")
    a("s_endpgm")

if __name__ == "__main__":
    build([("k1_kernel", gen_k1, 256, 512, 163840, 252, 102)], "k1.s")
    STAMP = True
    build([("k1_kernel", gen_k1, 256, 512, 163840, 256, 102)], "k1st.s")
```

```python
from asmlib import Asm
from gen import vr, sr, srd, kernel_desc, HEADER, build, NAME, WS_QKV, WS_H, WS_O, WS_SIZE
import gen2
FUSED = False
from gen2 import Stamper
import struct

STAMP = False
LDS_A = 0
LDS_G = 65536
LDS_SYNC = 131072
WS_CNT = 0xF00000
HB = 12
WL = 6

SCS = ' sc0 sc1'
PRIO = 0
def SC(): return SCS if FUSED else ''

def tile_common(a, V_X, V_LANE, V_TR, V_WV, S_T0, lds_base_sreg):
    R, C, MH, H, MG, X0, X1, X2 = [V_X + i for i in range(8)]
    a(f"v_bfe_u32 v{R}, v{V_LANE}, 2, 2")
    a(f"v_and_b32 v{C}, 3, v{V_LANE}")
    a(f"v_bfe_u32 v{MH}, v{V_LANE}, 4, 1")
    a(f"v_lshrrev_b32 v{H}, 5, v{V_LANE}")
    a(f"v_lshl_add_u32 v{MG}, v{MH}, 2, v{C}")
    a(f"v_and_b32 v{X0}, 1, v{MG}")
    a(f"v_lshlrev_b32 v{X0}, 2, v{X0}")
    a(f"v_lshrrev_b32 v{X1}, 1, v{MG}")
    a(f"v_or_b32 v{X0}, v{X0}, v{X1}")
    a(f"v_lshlrev_b32 v{X0}, 3, v{X0}")
    a(f"v_bfe_u32 v{X2}, v{R}, 1, 1")
    a(f"v_lshlrev_b32 v{X2}, 6, v{X2}")
    a(f"v_xor_b32 v{X0}, v{X0}, v{X2}")
    a(f"v_lshl_add_u32 v{X1}, v{H}, 3, v{R}")
    a(f"v_lshl_add_u32 v{X0}, v{X1}, 7, v{X0}")
    a(f"v_add_u32 v{V_TR}, s{lds_base_sreg}, v{X0}")
    a(f"v_add_u32 v{V_TR+1}, 512, v{V_TR}")
    a(f"v_xor_b32 v{V_TR+2}, 64, v{V_TR}")
    a(f"v_xor_b32 v{V_TR+3}, 64, v{V_TR+1}")
    a(f"v_lshrrev_b32 v{X0}, 3, v{V_LANE}")
    a(f"v_and_b32 v{X1}, 7, v{V_LANE}")
    a(f"v_bfe_u32 v{X2}, v{V_LANE}, 4, 1")
    a(f"v_lshlrev_b32 v{X2}, 2, v{X2}")
    a(f"v_xor_b32 v{X1}, v{X1}, v{X2}")
    a(f"v_lshlrev_b32 v{X1}, 4, v{X1}")
    a(f"s_movk_i32 s{S_T0}, 896")
    a(f"v_mad_u32_u24 v{V_WV}, v{X0}, s{S_T0}, v{X1}")

def attention(a, st):
    V_LANE, V_L16, V_VV, V_TRV, V_T = 1, 2, 3, 4, 5
    V_X = 6
    V_Q = 16; V_KF = 24; V_VF = 40; V_O = 56; V_P = 72; V_S = 96
    S_W, S_HD, S_T4, S_QB = 3, 33, 34, 35
    S_T0, S_T1, S_T2, S_T3 = 36, 37, 38, 39
    S_MHI = 40
    S_TB, S_FB = 52, 53
    SRD_WS = 4
    a(f"s_and_b32 s{S_HD}, s2, 15")
    a(f"s_lshr_b32 s{S_T4}, s2, 4")
    a(f"s_lshl_b32 s{S_QB}, s{S_T4}, 2")
    a(f"s_add_u32 s{S_QB}, s{S_QB}, s{S_W}")
    a(f"s_mov_b32 s{S_MHI}, 0")
    a(f"s_mov_b32 s{S_MHI+1}, -1")
    R, C, MH, H, X0, X1 = [V_X + i for i in range(6)]
    a(f"v_bfe_u32 v{R}, v{V_LANE}, 2, 2")
    a(f"v_and_b32 v{C}, 3, v{V_LANE}")
    a(f"v_bfe_u32 v{MH}, v{V_LANE}, 4, 1")
    a(f"v_lshrrev_b32 v{H}, 5, v{V_LANE}")
    a(f"v_and_b32 v{X0}, 1, v{C}")
    a(f"v_lshlrev_b32 v{X0}, 10, v{X0}")
    a(f"v_lshrrev_b32 v{X1}, 1, v{C}")
    a(f"v_lshl_add_u32 v{X0}, v{X1}, 9, v{X0}")
    a(f"v_lshrrev_b32 v{X1}, 2, v{V_LANE}")
    a(f"v_lshl_add_u32 v{V_VV}, v{X1}, 4, v{X0}")
    a(f"v_and_b32 v{X0}, 1, v{C}")
    a(f"v_lshlrev_b32 v{X0}, 1, v{X0}")
    a(f"v_lshl_add_u32 v{X0}, v{MH}, 2, v{X0}")
    a(f"v_lshrrev_b32 v{X1}, 1, v{C}")
    a(f"v_add_u32 v{X0}, v{X0}, v{X1}")
    a(f"v_lshlrev_b32 v{X0}, 3, v{X0}")
    a(f"v_lshl_add_u32 v{X1}, v{H}, 2, v{R}")
    a(f"v_lshl_add_u32 v{X0}, v{X1}, 6, v{X0}")
    a(f"s_lshl_b32 s{S_T0}, s{S_W}, 12")
    a(f"s_add_u32 s{S_T1}, s{S_T0}, {2048 + LDS_A}")
    a(f"v_add_u32 v{V_TRV}, s{S_T1}, v{X0}")
    V_KA = 12
    a(f"s_add_u32 s{S_T0}, s{S_T0}, {LDS_A}")
    a(f"v_add_u32 v{V_KA}, s{S_T0}, v{V_L16}")
    a(f"v_and_b32 v{X0}, 31, v{V_LANE}")
    a(f"v_lshlrev_b32 v{X1}, 2, v{H}")
    a(f"v_sub_u32 v{V_T}, v{X0}, v{X1}")
    a("s_waitcnt lgkmcnt(0)")
    srd(a, SRD_WS, 10, WS_SIZE)
    if FUSED:
        a(f"v_mov_b32 v{V_X}, {LDS_SYNC}")
        a(f"s_cmp_lg_u32 s{S_W}, 0")
        a("s_cbranch_scc1 K23_QW")
        a(f"v_min_u32 v{V_X+1}, 2, v{V_LANE}")
        a(f"v_sub_u32 v{V_X+1}, s{S_T4}, v{V_X+1}")
        a(f"v_max_i32 v{V_X+1}, 0, v{V_X+1}")
        a(f"v_lshlrev_b32 v{V_X+1}, 7, v{V_X+1}")
        a(f"s_mov_b32 s{S_T0}, 0xF02800")
        a.label("K23_QP")
        a(f"buffer_load_dword v{V_X+2}, v{V_X+1}, s[{SRD_WS}:{SRD_WS+3}], s{S_T0} offen sc0 sc1")
        a("s_waitcnt vmcnt(0)")
        a(f"v_cmp_gt_u32 vcc, 5, v{V_X+2}")
        a("s_nop 1")
        a("s_cmp_eq_u64 vcc, 0")
        a("s_cbranch_scc1 K23_QOK")
        a("s_sleep 4")
        a("s_branch K23_QP")
        a.label("K23_QOK")
        a(f"v_mov_b32 v{V_X+1}, 1")
        a(f"ds_write_b32 v{V_X}, v{V_X+1} offset:8")
        a("s_branch K23_QGO")
        a.label("K23_QW")
        a(f"ds_read_b32 v{V_X+1}, v{V_X} offset:8")
        a("s_waitcnt lgkmcnt(0)")
        a(f"v_readfirstlane_b32 s{S_T0}, v{V_X+1}")
        a(f"s_cmp_lg_u32 s{S_T0}, 0")
        a("s_cbranch_scc1 K23_QGO")
        a("s_sleep 2")
        a("s_branch K23_QW")
        a.label("K23_QGO")
    a(f"s_lshl_b32 s{S_T0}, s{S_HD}, 6")
    a(f"s_add_u32 s{S_T0}, s{S_T0}, s{S_QB}")
    a(f"s_lshl_b32 s{S_T0}, s{S_T0}, 11")
    a(f"buffer_load_dwordx4 {vr(V_Q,4)}, v{V_L16}, s[{SRD_WS}:{SRD_WS+3}], s{S_T0} offen{SC()}")
    a(f"buffer_load_dwordx4 {vr(V_Q+4,4)}, v{V_L16}, s[{SRD_WS}:{SRD_WS+3}], s{S_T0} offen offset:1024{SC()}")
    for u in range(3):
        a(f"s_lshl_b32 s{S_T0}, s{S_T4}, 2")
        a(f"s_add_u32 s{S_T0}, s{S_T0}, s{S_W}")
        a(f"s_add_i32 s{S_T0}, s{S_T0}, {4*u - 8}")
        a(f"s_max_i32 s{S_T0}, s{S_T0}, 0")
        a(f"s_lshl_b32 s{S_T1}, s{S_HD}, 6")
        a(f"s_add_u32 s{S_T0}, s{S_T0}, s{S_T1}")
        a(f"s_lshl_b32 s{S_T0}, s{S_T0}, 11")
        a(f"s_add_u32 s{S_T1}, s{S_T0}, {16*64*2048}")
        a(f"s_add_u32 s{S_T2}, s{S_T0}, {32*64*2048}")
        a(f"s_lshl_b32 s{S_T3}, s{S_W}, 12")
        a(f"s_add_u32 s{S_T3}, s{S_T3}, {u*16384 + LDS_A}")
        a(f"s_mov_b32 m0, s{S_T3}")
        a("s_nop 0")
        a(f"buffer_load_dwordx4 v{V_L16}, s[{SRD_WS}:{SRD_WS+3}], s{S_T1} offen{SC()} lds")
        a(f"buffer_load_dwordx4 v{V_L16}, s[{SRD_WS}:{SRD_WS+3}], s{S_T1} offen offset:1024{SC()} lds")
        a(f"s_add_u32 m0, s{S_T3}, 2048")
        a("s_nop 0")
        a(f"buffer_load_dwordx4 v{V_VV}, s[{SRD_WS}:{SRD_WS+3}], s{S_T2} offen{SC()} lds")
        a(f"s_add_u32 m0, s{S_T3}, 3072")
        a(f"s_add_u32 s{S_T2}, s{S_T2}, 256")
        a(f"buffer_load_dwordx4 v{V_VV}, s[{SRD_WS}:{SRD_WS+3}], s{S_T2} offen{SC()} lds")
    def lds_sync(off, tag):
        a(f"v_mov_b32 v{V_X}, {LDS_SYNC}")
        a(f"v_mov_b32 v{V_X+1}, 1")
        a("s_mov_b64 exec, 1")
        a(f"ds_add_u32 v{V_X}, v{V_X+1} offset:{off}")
        a("s_mov_b64 exec, -1")
        a.label(f"K23_SP{tag}")
        a(f"ds_read_b32 v{V_X+1}, v{V_X} offset:{off}")
        a("s_waitcnt lgkmcnt(0)")
        a(f"v_readfirstlane_b32 s{S_T0}, v{V_X+1}")
        a(f"s_cmp_ge_u32 s{S_T0}, 4")
        a(f"s_cbranch_scc1 K23_SG{tag}")
        a("s_sleep 1")
        a(f"s_branch K23_SP{tag}")
        a.label(f"K23_SG{tag}")
    a("s_waitcnt vmcnt(0)")
    lds_sync(0, "a")
    st()
    NEG = "0xf149f2ca"
    def kread(j):
        b = V_KF + 8 * (j & 1)
        a(f"ds_read_b128 {vr(b,4)}, v{V_KA} offset:{j*4096}")
        a(f"ds_read_b128 {vr(b+4,4)}, v{V_KA} offset:{j*4096+1024}")
    kread(0)
    for j in range(9):
        if j + 1 < 9:
            kread(j + 1); a("s_waitcnt lgkmcnt(2)")
        else:
            a("s_waitcnt lgkmcnt(0)")
        b = V_KF + 8 * (j & 1); S = vr(V_S + 16 * j, 16)
        a(f"v_mfma_f32_32x32x16_bf16 {S}, {vr(b,4)}, {vr(V_Q,4)}, 0")
        a(f"v_mfma_f32_32x32x16_bf16 {S}, {vr(b+4,4)}, {vr(V_Q+4,4)}, {S}")
    a(f"s_cmp_ge_u32 s{S_QB}, 8")
    a("s_cbranch_scc1 K2_NOINV")
    a("s_nop 15")
    for j in range(8):
        a(f"s_add_u32 s{S_T0}, s{S_QB}, {j}")
        a(f"s_cmp_ge_u32 s{S_T0}, 8")
        a(f"s_cbranch_scc1 K2_NOINV2")
        for r in range(16): a(f"v_mov_b32 v{V_S+16*j+r}, {NEG}")
    a.label("K2_NOINV2")
    a.label("K2_NOINV")
    a(f"v_mov_b32 v{V_X}, {NEG}")
    for r in range(16):
        cc = 8 * (r >> 2) + (r & 3)
        sp = 44 + 2 * (r % 4)
        a(f"v_cmp_lt_i32 s[{sp}:{sp+1}], v{V_T}, {cc}")
        if r >= 2:
            rr = r - 2; sq = 44 + 2 * (rr % 4)
            a(f"v_cndmask_b32 v{V_S+rr}, v{V_X}, v{V_S+rr}, s[{sq}:{sq+1}]")
            a(f"v_cndmask_b32 v{V_S+128+rr}, v{V_S+128+rr}, v{V_X}, s[{sq}:{sq+1}]")
    for rr in (14, 15):
        sq = 44 + 2 * (rr % 4)
        a(f"v_cndmask_b32 v{V_S+rr}, v{V_X}, v{V_S+rr}, s[{sq}:{sq+1}]")
        a(f"v_cndmask_b32 v{V_S+128+rr}, v{V_S+128+rr}, v{V_X}, s[{sq}:{sq+1}]")
    MX = [V_X + 1, V_X + 2, V_X + 3, V_X + 4]
    for i in range(4):
        a(f"v_max_f32 v{MX[i]}, v{V_S+i}, v{V_S+4+i}")
    for i in range(8, 144, 8):
        for q in range(4):
            a(f"v_max3_f32 v{MX[q]}, v{MX[q]}, v{V_S+i+q}, v{V_S+i+4+q}")
    a(f"v_max3_f32 v{MX[0]}, v{MX[0]}, v{MX[1]}, v{MX[2]}")
    a(f"v_max_f32 v{MX[0]}, v{MX[0]}, v{MX[3]}")
    a(f"v_mov_b32 v{MX[1]}, v{MX[0]}")
    a(f"v_permlane32_swap_b32 v{MX[0]}, v{MX[1]}")
    a(f"v_max_f32 v{MX[0]}, v{MX[0]}, v{MX[1]}")
    CS = 0.18898223650461362 * 1.4426950408889634
    cbits = struct.unpack("<I", struct.pack("<f", CS))[0]
    a(f"s_mov_b32 s{S_T0}, {cbits:#x}")
    NM = V_X + 5
    a(f"v_mul_f32 v{NM}, s{S_T0}, v{MX[0]}")
    a(f"v_sub_f32 v{NM}, 0, v{NM}")
    st()
    def vread(j, sp):
        b = V_VF + 4 * ((2 * j + sp) % 4)
        off = j * 4096 + sp * 1024
        a(f"ds_read_b64_tr_b16 {vr(b,2)}, v{V_TRV} offset:{off}")
        a(f"ds_read_b64_tr_b16 {vr(b+2,2)}, v{V_TRV} offset:{off+512}")
    vread(0, 0); vread(0, 1)
    for j in range(9):
        for sp in range(2):
            n = 2 * j + sp
            S = V_S + 16 * j + 8 * sp
            P = V_P + 4 * (n % 4)
            for r in range(8): a(f"v_fma_f32 v{S+r}, v{S+r}, s{S_T0}, v{NM}")
            for r in range(8): a(f"v_exp_f32 v{S+r}, v{S+r}")
            for r in range(4): a(f"v_cvt_pk_bf16_f32 v{P+r}, v{S+2*r}, v{S+2*r+1}")
            m = n + 2
            if m < 18:
                vread(m // 2, m % 2); a("s_waitcnt lgkmcnt(4)")
            elif m == 18: a("s_waitcnt lgkmcnt(2)")
            else: a("s_waitcnt lgkmcnt(0)")
            b = V_VF + 4 * (n % 4)
            a(f"v_mfma_f32_32x32x16_bf16 {vr(V_O,16)}, {vr(b,4)}, {vr(P,4)}, {'0' if n == 0 else vr(V_O,16)}")
    st()
    L0, L1, RI, RP = V_X, V_X + 1, V_X + 2, V_X + 3
    a("s_nop 7")
    a(f"v_mov_b32 v{L0}, v{V_O+12}")
    a(f"v_mov_b32 v{L1}, v{V_O+12}")
    a(f"v_permlane32_swap_b32 v{L0}, v{L1}")
    a(f"v_rcp_f32 v{RI}, v{L1}")
    a(f"v_cndmask_b32 v{RP}, v{RI}, 0, s[{S_MHI}:{S_MHI+1}]")
    for r in range(16):
        a(f"v_mul_f32 v{V_O+r}, v{V_O+r}, v{RI if r < 12 else RP}")
    for r in range(8):
        a(f"v_cvt_pk_bf16_f32 v{V_P+r}, v{V_O+2*r}, v{V_O+2*r+1}")
    a(f"s_lshl_b32 s{S_T0}, s{S_QB}, 4")
    a(f"s_add_u32 s{S_T0}, s{S_T0}, s{S_HD}")
    a(f"s_lshl_b32 s{S_T0}, s{S_T0}, 11")
    a(f"s_add_u32 s{S_T0}, s{S_T0}, {WS_O}")
    a(f"buffer_store_dwordx4 {vr(V_P,4)}, v{V_L16}, s[{SRD_WS}:{SRD_WS+3}], s{S_T0} offen sc0 sc1")
    a(f"buffer_store_dwordx4 {vr(V_P+4,4)}, v{V_L16}, s[{SRD_WS}:{SRD_WS+3}], s{S_T0} offen offset:1024 sc0 sc1")
    a("s_waitcnt vmcnt(0)")
    lds_sync(4, "b")
    a(f"s_cmp_lg_u32 s{S_W}, 0")
    a("s_cbranch_scc1 K23_NOSIG")
    a(f"s_lshr_b32 s{S_T0}, s{S_HD}, 2")
    a(f"s_lshl_b32 s{S_T1}, s{S_T4}, 2")
    a(f"s_add_u32 s{S_T0}, s{S_T0}, s{S_T1}")
    a(f"v_mov_b32 v{V_X}, 1")
    a(f"v_mov_b32 v{V_X+1}, 0")
    a(f"s_lshl_b32 s{S_T0}, s{S_T0}, 7")
    a(f"s_add_u32 s{S_T0}, s{S_T0}, {WS_CNT}")
    a("s_mov_b64 exec, 1")
    a(f"buffer_atomic_add v{V_X}, v{V_X+1}, s[{SRD_WS}:{SRD_WS+3}], s{S_T0} offen sc1")
    a("s_mov_b64 exec, -1")
    a.label("K23_NOSIG")
    st()
    a(f"s_cmp_ge_u32 s{S_FB}, 7")
    a("s_cbranch_scc1 K23_END0")
    V_TR, V_WV = 16, 20
    V_WF = 24; V_ACC = 96; V_BF = 160
    S_L0, S_WO, S_BO = 41, 42, 43
    SRD_WOO = 20
    a(f"s_lshl_b32 s{S_L0}, s{S_W}, 14")
    a(f"s_add_u32 s{S_L0}, s{S_L0}, {LDS_A}")
    tile_common(a, V_X, V_LANE, V_TR, V_WV, S_T0, S_L0)
    srd(a, SRD_WOO, 16, 401408)
    a(f"s_mul_i32 s{S_WO}, s{S_W}, {112*896}")
    a(f"s_lshl_b32 s{S_T0}, s{S_FB}, 7")
    a(f"s_add_u32 s{S_WO}, s{S_WO}, s{S_T0}")
    for u in range(8):
        a(f"s_add_u32 m0, s{S_L0}, {u*2048}")
        a(f"s_add_u32 s{S_T0}, s{S_WO}, {8*896}")
        a(f"buffer_load_dwordx4 v{V_WV}, s[{SRD_WOO}:{SRD_WOO+3}], s{S_WO} offen lds")
        a(f"s_add_u32 m0, s{S_L0}, {u*2048+1024}")
        a("s_nop 0")
        a(f"buffer_load_dwordx4 v{V_WV}, s[{SRD_WOO}:{SRD_WOO+3}], s{S_T0} offen lds")
        a(f"s_add_u32 s{S_WO}, s{S_WO}, {16*896 if u % 2 == 0 else 12*896}")
    a(f"s_lshr_b32 s{S_T0}, s{S_TB}, 1")
    a(f"s_lshl_b32 s{S_T0}, s{S_T0}, 2")
    a(f"s_add_u32 s{S_T0}, s{S_T0}, s{S_W}")
    a(f"s_lshl_b32 s{S_T0}, s{S_T0}, 7")
    a(f"s_add_u32 s{S_T0}, s{S_T0}, {WS_CNT}")
    a(f"v_mov_b32 v{V_X+1}, 0")
    a.label("K23_POLL")
    a(f"buffer_load_dword v{V_X}, v{V_X+1}, s[{SRD_WS}:{SRD_WS+3}], s{S_T0} offen sc0 sc1")
    a("s_waitcnt vmcnt(0)")
    a(f"v_readfirstlane_b32 s{S_T1}, v{V_X}")
    a(f"s_cmp_ge_u32 s{S_T1}, 4")
    a("s_cbranch_scc1 K23_READY")
    a("s_sleep 8")
    a("s_branch K23_POLL")
    a.label("K23_READY")
    st()
    a(f"s_lshl_b32 s{S_BO}, s{S_TB}, 16")
    a(f"s_lshl_b32 s{S_T0}, s{S_W}, 13")
    a(f"s_add_u32 s{S_BO}, s{S_BO}, s{S_T0}")
    a(f"s_add_u32 s{S_BO}, s{S_BO}, {WS_O}")
    for u in range(8):
        b = V_BF + 8 * u
        a(f"buffer_load_dwordx4 {vr(b,4)}, v{V_L16}, s[{SRD_WS}:{SRD_WS+3}], s{S_BO} offen sc0 sc1")
        a(f"s_add_u32 s{S_T0}, s{S_BO}, 32768")
        a(f"buffer_load_dwordx4 {vr(b+4,4)}, v{V_L16}, s[{SRD_WS}:{SRD_WS+3}], s{S_T0} offen sc0 sc1")
        a(f"s_add_u32 s{S_BO}, s{S_BO}, 1024")
    def trread(u):
        w = V_WF + 8 * (u % 2)
        for ft in range(2):
            a(f"ds_read_b64_tr_b16 {vr(w+4*ft,2)}, v{V_TR+2*ft} offset:{u*2048}")
            a(f"ds_read_b64_tr_b16 {vr(w+4*ft+2,2)}, v{V_TR+2*ft+1} offset:{u*2048}")
    trread(0)
    for u in range(8):
        if u + 1 < 8:
            trread(u + 1); a("s_waitcnt lgkmcnt(4)")
        else: a("s_waitcnt lgkmcnt(0)")
        a(f"s_waitcnt vmcnt({2*(7-u)})")
        w = V_WF + 8 * (u % 2); b = V_BF + 8 * u
        for th in range(2):
            for ft in range(2):
                A = vr(V_ACC + 16 * (2 * th + ft), 16)
                a(f"v_mfma_f32_32x32x16_bf16 {A}, {vr(w+4*ft,4)}, {vr(b+4*th,4)}, {'0' if u == 0 else A}")
    a(f"v_add_u32 v{V_X}, s{S_L0}, v{V_L16}")
    for t in range(4):
        for q in range(4):
            a(f"ds_write_b128 v{V_X}, {vr(V_ACC+16*t+4*q,4)} offset:{t*4096+q*1024}")
    st()

def gemm(a, st):
    V_LANE, V_L16, V_WV, V_TR = 1, 2, 3, 4
    V_X = 8; V_WF = 16; V_BF = 32; V_DN = 128
    S_W, S_TB, S_FB = 3, 52, 53
    S_T0, S_T1, S_T2, S_T3 = 36, 37, 38, 39
    S_WO, S_BO, S_L0 = 40, 41, 42
    SRD_WS, SRD_WD = 4, 8
    a(f"s_lshl_b32 s{S_L0}, s{S_W}, 14")
    a(f"s_add_u32 s{S_L0}, s{S_L0}, {LDS_G}")
    tile_common(a, V_X, V_LANE, V_TR, V_WV, S_T0, S_L0)
    a("s_waitcnt lgkmcnt(0)")
    a(f"s_cmp_ge_u32 s{S_FB}, 7")
    a("s_cbranch_scc1 K23_END0")
    srd(a, SRD_WS, 10, WS_SIZE)
    srd(a, SRD_WD, 14, 1605632)
    a(f"s_mul_i32 s{S_WO}, s{S_W}, {28*16*896}")
    a(f"s_lshl_b32 s{S_T0}, s{S_FB}, 7")
    a(f"s_add_u32 s{S_WO}, s{S_WO}, s{S_T0}")
    a(f"s_lshl_b32 s{S_T1}, s{S_TB}, 1")
    a(f"s_mul_i32 s{S_BO}, s{S_T1}, 112")
    a(f"s_mul_i32 s{S_T2}, s{S_W}, 28")
    a(f"s_add_u32 s{S_BO}, s{S_BO}, s{S_T2}")
    a(f"s_lshl_b32 s{S_BO}, s{S_BO}, 10")
    a(f"s_add_u32 s{S_BO}, s{S_BO}, {WS_H}")
    NS = 28
    ops = []
    def issue_w(n):
        slot = n % WL
        a(f"s_add_u32 m0, s{S_L0}, {slot*2048}")
        a(f"s_add_u32 s{S_T0}, s{S_WO}, {8*896}")
        a(f"buffer_load_dwordx4 v{V_WV}, s[{SRD_WD}:{SRD_WD+3}], s{S_WO} offen lds")
        a(f"s_add_u32 m0, s{S_L0}, {slot*2048+1024}")
        a("s_nop 0")
        a(f"buffer_load_dwordx4 v{V_WV}, s[{SRD_WD}:{SRD_WD+3}], s{S_T0} offen lds")
        a(f"s_add_u32 s{S_WO}, s{S_WO}, {16*896}")
        ops.extend([("w", n)] * 2)
    def issue_b(n):
        b = V_BF + 8 * (n % HB)
        a(f"buffer_load_dwordx4 {vr(b,4)}, v{V_L16}, s[{SRD_WS}:{SRD_WS+3}], s{S_BO} offen{SC()}")
        a(f"s_add_u32 s{S_T0}, s{S_BO}, {112*1024}")
        a(f"buffer_load_dwordx4 {vr(b+4,4)}, v{V_L16}, s[{SRD_WS}:{SRD_WS+3}], s{S_T0} offen{SC()}")
        a(f"s_add_u32 s{S_BO}, s{S_BO}, 1024")
        ops.extend([("b", n)] * 2)
    def wait_for(tags):
        idx = max(i for i, t in enumerate(ops) if t in tags)
        a(f"s_waitcnt vmcnt({len(ops)-1-idx})")
    def trread(n):
        slot = n % WL; w = V_WF + 8 * (n % 2)
        for ft in range(2):
            a(f"ds_read_b64_tr_b16 {vr(w+4*ft,2)}, v{V_TR+2*ft} offset:{slot*2048}")
            a(f"ds_read_b64_tr_b16 {vr(w+4*ft+2,2)}, v{V_TR+2*ft+1} offset:{slot*2048}")
    if FUSED:
        for n in range(WL - 1): issue_w(n)
        a(f"v_mov_b32 v{V_X}, {LDS_SYNC}")
        a(f"s_cmp_lg_u32 s{S_W}, 0")
        a("s_cbranch_scc1 K23_HW")
        a(f"s_lshr_b32 s{S_T0}, s{S_TB}, 1")
        a(f"s_lshl_b32 s{S_T0}, s{S_T0}, 7")
        a(f"s_add_u32 s{S_T0}, s{S_T0}, 0xF02000")
        a(f"v_mov_b32 v{V_X+1}, 0")
        a.label("K23_HP")
        a(f"buffer_load_dword v{V_X+2}, v{V_X+1}, s[{SRD_WS}:{SRD_WS+3}], s{S_T0} offen sc0 sc1")
        a("s_waitcnt vmcnt(0)")
        a(f"v_readfirstlane_b32 s{S_T1}, v{V_X+2}")
        a(f"s_cmp_ge_u32 s{S_T1}, 12")
        a("s_cbranch_scc1 K23_HOK")
        a("s_sleep 4")
        a("s_branch K23_HP")
        a.label("K23_HOK")
        a(f"v_mov_b32 v{V_X+1}, 1")
        a(f"ds_write_b32 v{V_X}, v{V_X+1} offset:12")
        a("s_branch K23_HGO")
        a.label("K23_HW")
        a(f"ds_read_b32 v{V_X+1}, v{V_X} offset:12")
        a("s_waitcnt lgkmcnt(0)")
        a(f"v_readfirstlane_b32 s{S_T0}, v{V_X+1}")
        a(f"s_cmp_lg_u32 s{S_T0}, 0")
        a("s_cbranch_scc1 K23_HGO")
        a("s_sleep 2")
        a("s_branch K23_HW")
        a.label("K23_HGO")
        for n in range(HB - 1): issue_b(n)
    else:
        for n in range(HB - 1):
            if n < WL - 1: issue_w(n)
            issue_b(n)
    st()
    wait_for([("w", 0)])
    trread(0)
    for n in range(NS):
        if n + HB - 1 < NS: issue_b(n + HB - 1)
        if n + WL - 1 < NS: issue_w(n + WL - 1)
        if n + 1 < NS:
            wait_for([("w", n + 1), ("b", n)])
            trread(n + 1)
            a("s_waitcnt lgkmcnt(4)")
        else:
            wait_for([("b", n)])
            a("s_waitcnt lgkmcnt(0)")
        w = V_WF + 8 * (n % 2); b = V_BF + 8 * (n % HB)
        for th in range(2):
            for ft in range(2):
                A = vr(V_DN + 16 * (2 * th + ft), 16)
                a(f"v_mfma_f32_32x32x16_bf16 {A}, {vr(w+4*ft,4)}, {vr(b+4*th,4)}, {'0' if n == 0 else A}")
    st()
    a(f"v_add_u32 v{V_X}, s{S_L0}, v{V_L16}")
    for t in range(4):
        for q in range(4):
            a(f"ds_write_b128 v{V_X}, {vr(V_DN+16*t+4*q,4)} offset:{t*4096+q*1024}")
    st()

def final(a, st):
    V_LANE, V_L16 = 1, 2
    V_X = 8; DN = 32; SS = 40; RD = 48; XV = 120; TT = 128; V_XO = 16
    S_U, S_TB, S_FB = 97, 52, 53
    S_T0, S_T1, S_T2, S_T3 = 36, 37, 38, 39
    SRD_X, SRD_OUT = 24, 28
    srd(a, SRD_X, 18, 1835008)
    srd(a, SRD_OUT, 56, 1835008)
    a(f"s_and_b32 s{S_T0}, s{S_U}, 3")
    a(f"s_lshr_b32 s{S_T1}, s{S_T0}, 1")
    a(f"s_lshl_b32 s{S_T2}, s{S_TB}, 1")
    a(f"s_add_u32 s{S_T2}, s{S_T2}, s{S_T1}")
    a(f"s_mul_i32 s{S_T2}, s{S_T2}, {32*896}")
    a(f"s_lshl_b32 s{S_T3}, s{S_FB}, 7")
    a(f"s_add_u32 s{S_T2}, s{S_T2}, s{S_T3}")
    a(f"s_and_b32 s{S_T1}, s{S_U}, 1")
    a(f"s_lshl_b32 s{S_T1}, s{S_T1}, 6")
    a(f"s_add_u32 s{S_T2}, s{S_T2}, s{S_T1}")
    a(f"s_lshr_b32 s{S_T1}, s{S_U}, 2")
    a(f"s_lshl_b32 s{S_T3}, s{S_T1}, 4")
    a(f"s_add_u32 s{S_T2}, s{S_T2}, s{S_T3}")
    a(f"v_and_b32 v{V_X}, 31, v{V_LANE}")
    a(f"s_movk_i32 s{S_T3}, 896")
    a(f"v_mul_u32_u24 v{V_X}, s{S_T3}, v{V_X}")
    a(f"v_lshrrev_b32 v{V_X+1}, 5, v{V_LANE}")
    a(f"v_lshl_add_u32 v{V_XO}, v{V_X+1}, 5, v{V_X}")
    a(f"buffer_load_dwordx4 {vr(XV,4)}, v{V_XO}, s[{SRD_X}:{SRD_X+3}], s{S_T2} offen")
    a(f"s_lshl_b32 s{S_T0}, s{S_T0}, 12")
    a(f"s_lshl_b32 s{S_T1}, s{S_T1}, 11")
    a(f"s_add_u32 s{S_T0}, s{S_T0}, s{S_T1}")
    a(f"v_add_u32 v{V_X}, s{S_T0}, v{V_L16}")
    a("s_waitcnt lgkmcnt(0)")
    a("s_barrier")
    for g in range(4):
        for q in range(2):
            a(f"ds_read_b128 {vr(RD+16*g+4*q,4)}, v{V_X} offset:{g*16384+q*1024}")
    a(f"v_add_u32 v{V_X}, {LDS_G}, v{V_X}")
    for g in range(4):
        for q in range(2):
            a(f"ds_read_b128 {vr(RD+16*g+8+4*q,4)}, v{V_X} offset:{g*16384+q*1024}")
    a("s_waitcnt lgkmcnt(0)")
    for r in range(16):
        a(f"v_add_f32 v{RD+r}, v{RD+r}, v{RD+16+r}")
        a(f"v_add_f32 v{RD+32+r}, v{RD+32+r}, v{RD+48+r}")
    for r in range(16):
        a(f"v_add_f32 v{RD+r}, v{RD+r}, v{RD+32+r}")
    SS, DN = RD, RD + 8
    for r in range(8): a(f"v_mul_f32 v{TT+r}, 0xbfb8aa3b, v{DN+r}")
    for r in range(8): a(f"v_exp_f32 v{TT+r}, v{TT+r}")
    for r in range(8): a(f"v_add_f32 v{TT+r}, 1.0, v{TT+r}")
    for r in range(8): a(f"v_rcp_f32 v{TT+r}, v{TT+r}")
    for r in range(8): a(f"v_mul_f32 v{DN+r}, v{DN+r}, v{TT+r}")
    a("s_waitcnt vmcnt(0)")
    for r in range(4):
        a(f"v_lshlrev_b32 v{TT+2*r}, 16, v{XV+r}")
        a(f"v_and_b32 v{TT+2*r+1}, 0xffff0000, v{XV+r}")
    for r in range(8): a(f"v_fma_f32 v{TT+r}, v{SS+r}, v{DN+r}, v{TT+r}")
    for r in range(4): a(f"v_cvt_pk_bf16_f32 v{XV+r}, v{TT+2*r}, v{TT+2*r+1}")
    a(f"buffer_store_dwordx4 {vr(XV,4)}, v{V_XO}, s[{SRD_OUT}:{SRD_OUT+3}], s{S_T2} offen")

P1 = None
def gen_fused(a):
    global FUSED
    FUSED = True; gen2.FUSED = True
    (P1 or gen2.gen_k1)(a)
    gen_k23(a, True)
    FUSED = False; gen2.FUSED = False

def gen_k23(a, fused=False):
    st = Stamper(a, STAMP)
    if not fused:
        a("s_cmp_ge_u32 s2, 256")
        a("s_cbranch_scc1 K23_END")
    st()
    a("s_load_dwordx2 s[10:11], s[0:1], 72")
    a("s_load_dwordx2 s[14:15], s[0:1], 48")
    a("s_load_dwordx2 s[16:17], s[0:1], 16")
    a("s_load_dwordx2 s[18:19], s[0:1], 0")
    a("s_load_dwordx2 s[56:57], s[0:1], 56")
    a("v_and_b32 v1, 63, v0")
    a("v_lshrrev_b32 v6, 6, v0")
    a("v_lshlrev_b32 v2, 4, v1")
    a("v_readfirstlane_b32 s3, v6")
    a(f"v_mov_b32 v6, {LDS_SYNC}")
    a("v_mov_b32 v8, 0")
    a("v_mov_b32 v9, 0")
    a("v_mov_b32 v10, 0")
    a("v_mov_b32 v11, 0")
    a("ds_write_b128 v6, v[8:11]")
    a("s_and_b32 s36, s2, 7")
    a("s_lshr_b32 s37, s2, 3")
    a("s_lshl_b32 s52, s36, 2")
    a("s_and_b32 s38, s37, 3")
    a("s_add_u32 s52, s52, s38")
    a("s_lshr_b32 s53, s37, 2")
    a("s_waitcnt lgkmcnt(0)")
    a("s_barrier")
    a("s_mov_b32 s97, s3")
    a("s_cmp_lt_u32 s3, 4")
    a("s_cbranch_scc1 K23_ATT")
    a("s_sub_u32 s3, s3, 4")
    gemm(a, st)
    a("s_branch K23_FIN")
    a.label("K23_ATT")
    if PRIO: a(f"s_setprio {PRIO}")
    st.n = 1
    attention(a, st)
    a.label("K23_FIN")
    final(a, st)
    a.label("K23_END0")
    if STAMP:
        a("s_waitcnt vmcnt(0)")
        st.n = 8
        st()
        a("s_load_dwordx2 s[16:17], s[0:1], 72")
        a("s_waitcnt lgkmcnt(0)")
        a("s_add_u32 s16, s16, 0x4000000")
        a("s_addc_u32 s17, s17, 0")
        a("s_mov_b32 s18, 65536")
        a("s_mov_b32 s19, 0x00020000")
        a("s_cmp_lg_u32 s2, 37")
        a("s_cbranch_scc1 K23_END")
        a("s_lshl_b32 s15, s97, 7")
        a("v_and_b32 v241, 63, v0")
        a("v_lshlrev_b32 v241, 2, v241")
        a("v_cmp_gt_u32 vcc, 128, v241")
        a("s_and_saveexec_b64 s[98:99], vcc")
        a("buffer_store_dword v252, v241, s[16:19], s15 offen")
    a.label("K23_END")
    if fused: a.label("K1_END")
    a("s_endpgm")

K1 = ("k1_kernel", gen2.gen_k1, 256, 512, 163840, 252, 102)
K23 = ("k23_kernel", gen_k23, 256, 512, 131088 + 112, 256, 102)
KF = (NAME + "_kernel", gen_fused, 256, 512, 163840, 256, 102)
if __name__ == "__main__":
    gen2.STF = ' sc0 sc1'
    build([K1, K23], "all3.s")
    build([KF], "fused.s")
    STAMP = True
    build([K1, K23], "all3st.s")
```

```python
import gen2, gen6, sys
from gen import build
def mk(name, g6={}, g2={}):
    gen2.STF = ' sc0 sc1'; gen6.SCS = ' sc0 sc1'; gen6.PRIO = 0; gen6.HB = 12; gen6.WL = 6; gen6.P1 = None; gen2.PFW = True; gen2.XF = 0
    for k, v in g6.items(): setattr(gen6, k, v)
    for k, v in g2.items(): setattr(gen2, k, v)
    build([gen6.KF], f"cdna_kernels/{name}.s")
mk("v_a")
mk("v_b", g2=dict(XF=1))
mk("v_c", g2=dict(XF=1, ROT=False))
```
